```python
import torch

def _softmax(x, axis=-1):
    return torch.softmax(x, dim=axis)
def _gelu(x):
    return torch.nn.functional.gelu(x, approximate="tanh")
def _silu(x):
    return torch.nn.functional.silu(x)
def _sigmoid(x):
    return torch.sigmoid(x)
def _layernorm(x, axis=-1, eps=1e-5):
    m = x.mean(dim=axis, keepdim=True)
    v = x.var(dim=axis, keepdim=True, unbiased=False)
    return (x - m) / torch.sqrt(v + eps)
def _scatter_add(tgt, idx, src, axis=0):
    return tgt.clone().index_add_(axis, idx, src)
def _segment_sum(src, seg, n):
    out = torch.zeros((n,) + src.shape[1:], dtype=src.dtype)
    return out.index_add_(0, seg, src)
def _pad(x, pw):
    flat = tuple(v for pair in reversed(pw) for v in pair)
    return torch.nn.functional.pad(x, flat)

kernel_name = 'gated_mix__gqa_block_cached__glu_gated_bilinear__decode'

def setup_inputs():

    _w = (lambda a: (lambda t: t.to(torch.bfloat16) if t.is_floating_point() else t)(torch.as_tensor(a)))
    def _A_setup():
        B, Sq, D = 1, 1, 640
        Hq, Hkv, Sk, Dh = 32, 32, 8192, 192
        assert Hq % Hkv == 0, (Hq, Hkv)
        return {
            "x": _w((lambda *s: torch.randn(*s, dtype=torch.bfloat16) * 0.05)(B, Sq, D)),
            "k_cache": _w((lambda *s: torch.randn(*s, dtype=torch.bfloat16) * 3.2)(B, Hkv, Sk, Dh)),
            "v_cache": _w((lambda *s: torch.randn(*s, dtype=torch.bfloat16) * 0.05)(B, Hkv, Sk, Dh)),
            "wq": _w((lambda *s: torch.randn(*s, dtype=torch.bfloat16) * 3.2)(D, Hq * Dh) * (D ** -0.5)),
            "wo": _w((lambda *s: torch.randn(*s, dtype=torch.bfloat16) * 0.05)(Hq * Dh, D) * ((Hq * Dh) ** -0.5)),
        }
    _A_in = _A_setup()

    def _B_setup():
        B, S, D, F = 1, 1, 640, 1536
        return {
            "x": _w((lambda *s: torch.randn(*s, dtype=torch.bfloat16) * 0.05)(B, S, D)),
            "w_gate": _w((lambda *s: torch.randn(*s, dtype=torch.bfloat16) * 0.2)(D, F) * (D ** -0.5)),
            "w_up": _w((lambda *s: torch.randn(*s, dtype=torch.bfloat16) * 0.2)(D, F) * (D ** -0.5)),
            "w_down": _w((lambda *s: torch.randn(*s, dtype=torch.bfloat16) * 0.2)(F, D) * (F ** -0.5)),
        }
    _B_in = _B_setup()

    return {
        "A_x": _A_in["x"],
        "A_k_cache": _A_in["k_cache"],
        "A_v_cache": _A_in["v_cache"],
        "A_wq": _A_in["wq"],
        "A_wo": _A_in["wo"],
        "B_x": _B_in["x"],
        "B_w_gate": _B_in["w_gate"],
        "B_w_up": _B_in["w_up"],
        "B_w_down": _B_in["w_down"],
        "gate_w": _w((lambda *s: torch.randn(*s, dtype=torch.bfloat16) * 0.05)(640) * 16.0),
    }

def reference(A_x, A_k_cache, A_v_cache, A_wq, A_wo, B_x, B_w_gate, B_w_up, B_w_down, gate_w):
    def _A_ref(x, k_cache, v_cache, wq, wo):
        B, Sq, D = x.shape
        Hq, Dh = 32, 192
        Hkv = k_cache.shape[1]
        rep = Hq // Hkv
        q = (lambda x, *d: x.permute(*d))((x @ wq).reshape(B, Sq, Hq, Dh), 0, 2, 1, 3)
        k = (lambda x, n, axis: torch.repeat_interleave(x, n, dim=axis))(k_cache, rep, axis=1)
        v = (lambda x, n, axis: torch.repeat_interleave(x, n, dim=axis))(v_cache, rep, axis=1)
        scores = torch.einsum("bhqd,bhkd->bhqk", q, k) * (Dh ** -0.5)
        p = _softmax(scores, axis=-1)
        o = torch.einsum("bhqk,bhkd->bhqd", p, v)
        return (lambda x, *d: x.permute(*d))(o, 0, 2, 1, 3).reshape(B, Sq, Hq * Dh) @ wo

    def _B_ref(x, w_gate, w_up, w_down):
        g = torch.einsum("bsd,df->bsf", x, w_gate)
        u = torch.einsum("bsd,df->bsf", x, w_up)
        h = g * u
        return torch.einsum("bsf,fd->bsd", h, w_down)

    x = A_x
    g = _sigmoid((x * gate_w).sum(-1, keepdims=True))
    a = _A_ref(x, A_k_cache, A_v_cache, A_wq, A_wo)
    b = _B_ref(x, B_w_gate, B_w_up, B_w_down)
    return g * a + (1 - g) * b
```

```python
import re

TRANS = ("v_exp_f32", "v_log_f32", "v_rcp_f32", "v_rsq_f32", "v_sqrt_f32", "v_sin_f32", "v_cos_f32")


def _regs(tok, kind):
    tok = tok.strip()
    tok = tok.lstrip("-")
    tok = re.sub(r"^abs\((.*)\)$", r"\1", tok)
    m = re.fullmatch(kind + r"(\d+)", tok)
    if m:
        return [int(m.group(1))]
    m = re.fullmatch(kind + r"\[(\d+):(\d+)\]", tok)
    if m:
        return list(range(int(m.group(1)), int(m.group(2)) + 1))
    if kind == "s" and tok == "vcc":
        return [106, 107]
    return []


class Inst:
    def __init__(self, text):
        self.text = text
        body = text.split(";")[0].strip()
        parts = body.split(None, 1)
        self.op = parts[0]
        rest = parts[1] if len(parts) > 1 else ""
        ops = []
        depth = 0
        cur = ""
        for ch in rest:
            if ch == "[":
                depth += 1
            if ch == "]":
                depth -= 1
            if ch == "," and depth == 0:
                ops.append(cur.strip())
                cur = ""
            else:
                cur += ch
        if cur.strip():
            ops.append(cur.strip())
        self.mods = ""
        if ops:
            last = ops[-1].split(None, 1)
            ops[-1] = last[0]
            if len(last) > 1:
                self.mods = last[1]
        self.ops = ops
        op = self.op
        self.is_valu = op.startswith("v_")
        self.is_vmem = op.startswith("buffer_") or op.startswith("global_")
        self.is_ds = op.startswith("ds_")
        self.is_salu = op.startswith("s_")
        self.is_dpp = any(k in self.mods for k in ("quad_perm", "row_", "wave_"))
        self.is_trans = op in TRANS
        self.is_dot = op.startswith("v_dot")
        self.is_permlane = op.startswith("v_permlane")
        self.is_readlane = op in ("v_readlane_b32", "v_readfirstlane_b32")
        self.vw, self.vr, self.sw, self.sr = set(), set(), set(), set()
        self.store_data = set()
        if self.is_valu:
            if op.startswith("v_cmp"):
                self.sw |= set(_regs(ops[0], "s"))
                for o in ops[1:]:
                    self.vr |= set(_regs(o, "v"))
                    self.sr |= set(_regs(o, "s"))
            elif self.is_readlane:
                self.sw |= set(_regs(ops[0], "s"))
                for o in ops[1:]:
                    self.vr |= set(_regs(o, "v"))
                    self.sr |= set(_regs(o, "s"))
            elif self.is_permlane:
                for o in ops:
                    self.vw |= set(_regs(o, "v"))
                    self.vr |= set(_regs(o, "v"))
            else:
                self.vw |= set(_regs(ops[0], "v"))
                for o in ops[1:]:
                    self.vr |= set(_regs(o, "v"))
                    self.sr |= set(_regs(o, "s"))
                if op.startswith("v_fmac") or op.startswith("v_dot2c") or op == "v_writelane_b32":
                    self.vr |= set(_regs(ops[0], "v"))
                if op.startswith("v_cndmask") and len(ops) == 3:
                    self.sr |= {106, 107}
        elif self.is_vmem:
            if "load" in op:
                self.vw |= set(_regs(ops[0], "v"))
                for o in ops[1:]:
                    self.vr |= set(_regs(o, "v"))
                    self.sr |= set(_regs(o, "s"))
            else:
                for o in ops:
                    self.vr |= set(_regs(o, "v"))
                    self.sr |= set(_regs(o, "s"))
                if "x3" in op or "x4" in op:
                    self.store_data = set(_regs(ops[0], "v"))
                if "atomic" in op and "sc0" in self.mods:
                    self.vw |= set(_regs(ops[0], "v"))
        elif self.is_ds:
            if "read" in op or "permute" in op or "swizzle" in op:
                self.vw |= set(_regs(ops[0], "v"))
                for o in ops[1:]:
                    self.vr |= set(_regs(o, "v"))
            else:
                for o in ops:
                    self.vr |= set(_regs(o, "v"))
        self.states = 1
        if op == "s_nop":
            self.states = int(ops[0]) + 1


class Emit:
    def __init__(self):
        self.lines = []
        self.hist = []
        self.vm = []
        self.vm_done = 0
        self.vm_issued = 0
        self.tagpos = {}

    def raw(self, s):
        self.lines.append(s)

    def label(self, name):
        self.lines.append(name + ":")
        self.hist = []

    def comment(self, s):
        self.lines.append("    ; " + s)

    def _need(self, cur):
        need = 0
        dist = 0
        for prev in reversed(self.hist[-8:]):
            req = 0
            if prev.is_valu:
                if cur.is_valu and cur.is_dpp and (prev.vw & cur.vr):
                    req = max(req, 2)
                if cur.is_permlane and (prev.vw & (cur.vr | cur.vw)):
                    req = max(req, 2)
                if prev.is_trans and not cur.is_trans and (prev.vw & (cur.vr | cur.vw)):
                    req = max(req, 1)
                if prev.is_dot and (prev.vw & (cur.vr | cur.vw)):
                    if not (cur.op == prev.op and not (prev.vw & set(sum([_regs(o, "v") for o in cur.ops[1:]], [])))):
                        req = max(req, 3)
                if cur.is_readlane and (prev.vw & cur.vr):
                    req = max(req, 1)
                if prev.sw:
                    if cur.is_valu and (prev.sw & cur.sr):
                        req = max(req, 2)
                    if cur.is_vmem and (prev.sw & cur.sr):
                        req = max(req, 5)
                    if cur.is_salu:
                        srcs = set(sum([_regs(o, "s") for o in cur.ops], []))
                        if prev.sw & srcs:
                            req = max(req, 2)
            if prev.store_data and (prev.store_data & cur.vw):
                req = max(req, 2)
            if req - dist > need:
                need = req - dist
            dist += prev.states
        return need

    def i(self, text, tag=None):
        ins = Inst(text)
        n = self._need(ins)
        if n > 0:
            nop = Inst("s_nop %d" % (n - 1))
            self.lines.append("    " + nop.text)
            self.hist.append(nop)
        self.lines.append("    " + text)
        self.hist.append(ins)
        if ins.is_vmem:
            self.vm_issued += 1
            if tag is not None:
                self.tagpos[tag] = self.vm_issued
        return ins

    def wait_vm(self, tag):
        pos = self.tagpos[tag]
        if pos <= self.vm_done:
            return
        n = self.vm_issued - pos
        assert n <= 63, n
        self.i("s_waitcnt vmcnt(%d)" % n)
        self.vm_done = pos

    def wait_vm_all(self):
        self.i("s_waitcnt vmcnt(0)")
        self.vm_done = self.vm_issued

    def outstanding(self):
        return self.vm_issued - self.vm_done

    def text(self):
        return "\n".join(self.lines) + "\n"
```

```python
import struct
import sys

sys.path.insert(0, "gen")
from emit import Emit

OUT = "gated_mix__gqa_block_cached__glu_gated_bilinear__decode.s"


def f32(x):
    return "0x%08x" % struct.unpack("<I", struct.pack("<f", x))[0]


LOG2E = 1.4426950408889634
SCALE = 192 ** -0.5

KV_BYTES = 100663296
WQ_BYTES = 640 * 6144 * 2
WO_BYTES = 6144 * 640 * 2
WG_BYTES = 640 * 1536 * 2
WD_BYTES = 1536 * 640 * 2
WS_BYTES = 402653184
PART_OFF = 0x100000

S_K, S_V, S_WQ, S_X, S_WG, S_WU, S_WS, S_WO, S_WD, S_GW, S_OUT, S_DBG = (
    32, 36, 40, 44, 48, 52, 56, 60, 64, 68, 72, 76)
S_H, S_S, S_W = 80, 81, 82
S_MASK = 89

NT = " nt"


def srd(e, base, ptr, nbytes):
    e.i("s_mov_b32 s%d, s%d" % (base, ptr))
    e.i("s_and_b32 s%d, s%d, 0xffff" % (base + 1, ptr + 1))
    e.i("s_mov_b32 s%d, %d" % (base + 2, nbytes))
    e.i("s_mov_b32 s%d, 0x00020000" % (base + 3))


def R(a, n):
    return "v[%d:%d]" % (a, a + n - 1)


def S4(a):
    return "s[%d:%d]" % (a, a + 3)


def common_prologue(e, exit_label):
    e.i("s_cmp_ge_u32 s2, 256")
    e.i("s_cbranch_scc1 %s" % exit_label)
    e.i("s_load_dwordx16 s[4:19], s[0:1], 0")
    e.i("s_load_dwordx8 s[20:27], s[0:1], 64")
    e.i("s_load_dwordx2 s[28:29], s[0:1], 96")
    e.i("v_and_b32 v1, 63, v0")
    e.i("v_lshrrev_b32 v4, 6, v0")
    e.i("v_readfirstlane_b32 s%d, v4" % S_W)
    e.i("s_and_b32 s%d, s2, 7" % S_H)
    e.i("s_lshl_b32 s%d, s%d, 2" % (S_H, S_H))
    e.i("s_lshr_b32 s%d, s2, 3" % S_S)
    e.i("s_and_b32 s83, s%d, 3" % S_S)
    e.i("s_add_u32 s%d, s%d, s83" % (S_H, S_H))
    e.i("s_lshr_b32 s%d, s2, 5" % S_S)
    e.i("s_mov_b32 s%d, 0xffff0000" % S_MASK)


def dpp_full_reduce(e, regs):
    for mod in ("row_shr:1 row_mask:0xf bank_mask:0xf bound_ctrl:0",
                "row_shr:2 row_mask:0xf bank_mask:0xf bound_ctrl:0",
                "row_shr:4 row_mask:0xf bank_mask:0xf bound_ctrl:0",
                "row_shr:8 row_mask:0xf bank_mask:0xf bound_ctrl:0",
                "row_bcast:15 row_mask:0xa bank_mask:0xf",
                "row_bcast:31 row_mask:0xc bank_mask:0xf"):
        for r in regs:
            e.i("v_add_f32_dpp v%d, v%d, v%d %s" % (r, r, r, mod))


def reduce24(e, acc):
    for i in range(12):
        e.i("v_permlane32_swap_b32 v%d, v%d" % (acc + 2 * i, acc + 2 * i + 1))
    for i in range(12):
        e.i("v_add_f32 v%d, v%d, v%d" % (acc + 2 * i, acc + 2 * i, acc + 2 * i + 1))
    for k in range(6):
        e.i("v_permlane16_swap_b32 v%d, v%d" % (acc + 4 * k, acc + 4 * k + 2))
    for k in range(6):
        e.i("v_add_f32 v%d, v%d, v%d" % (acc + 4 * k, acc + 4 * k, acc + 4 * k + 2))
    for k in range(6):
        e.i("v_add_f32_dpp v%d, v%d, v%d row_ror:8 row_mask:0xf bank_mask:0xf" % (acc + 4 * k, acc + 4 * k, acc + 4 * k))


def fma_slot(e, base, acc, coef, temps):
    nt = len(temps)
    for k in range(12):
        t0 = temps[(2 * k) % nt]
        t1 = temps[(2 * k + 1) % nt]
        e.i("v_lshlrev_b32 v%d, 16, v%d" % (t0, base + k))
        e.i("v_and_b32 v%d, s%d, v%d" % (t1, S_MASK, base + k))
        e.i("v_fmac_f32 v%d, v%d, v%d" % (acc + 2 * k, coef, t0))
        e.i("v_fmac_f32 v%d, v%d, v%d" % (acc + 2 * k + 1, coef, t1))


def bf16_round_pair(e, a, b, t):
    e.i("v_cvt_pk_bf16_f32 v%d, v%d, v%d" % (t, a, b))
    e.i("v_lshlrev_b32 v%d, 16, v%d" % (a, t))
    e.i("v_and_b32 v%d, s%d, v%d" % (b, S_MASK, t))


def bf16_round(e, a, t):
    e.i("v_cvt_pk_bf16_f32 v%d, v%d, v%d" % (t, a, a))
    e.i("v_lshlrev_b32 v%d, 16, v%d" % (a, t))


L_RED = 0
L_FFN = 6144
L_QB = 6528
L_ML = 6912
MAIN_LDS = 7168

ACC = 8
QR = 32
SC = 44
SLOT0 = 64


def slot(t):
    return SLOT0 + 12 * t


def kv_loads(e, srdbase, t, tagp):
    e.i("s_add_u32 s88, s87, %d" % (t * 3072))
    for j in range(3):
        e.i("buffer_load_dwordx4 %s, v2, %s, s88 offen offset:%d%s" % (R(slot(t) + 4 * j, 4), S4(srdbase), j * 128, NT),
            tag=(tagp, t, j))


def main_kernel(e):
    name = "attn_main_kernel"
    e.raw(".globl %s" % name)
    e.raw(".p2align 8")
    e.raw(".type %s,@function" % name)
    e.raw("%s:" % name)
    common_prologue(e, "L_main_exit")
    e.i("v_lshrrev_b32 v4, 3, v1")
    e.i("v_and_b32 v5, 7, v1")
    e.i("v_lshlrev_b32 v5, 4, v5")
    e.i("v_mul_u32_u24 v2, 0x180, v4")
    e.i("v_add_u32 v2, v2, v5")
    e.i("v_mul_u32_u24 v3, %d, v4" % (10 * 12288))
    e.i("v_add_u32 v3, v3, v5")
    e.i("v_mul_u32_u24 v6, 20, v4")
    e.i("v_mul_u32_u24 v7, 3072, v1")
    e.i("v_lshlrev_b32 v55, 1, v1")
    for r in (36, 37, 38, 44, 45, 46, 54):
        e.i("v_mov_b32 v%d, 0" % r)
    for r in range(24):
        e.i("v_mov_b32 v%d, 0" % (ACC + r))
    e.i("s_mul_i32 s84, s%d, 160" % S_W)
    e.i("s_mul_i32 s85, s%d, %d" % (S_W, 80 * 12288))
    e.i("s_mul_i32 s83, s%d, 384" % S_H)
    e.i("s_add_u32 s85, s85, s83")
    e.i("s_mul_i32 s86, s%d, %d" % (S_W, 80 * 3072))
    e.i("s_mul_i32 s83, s%d, 96" % S_H)
    e.i("s_add_u32 s86, s86, s83")
    e.i("s_mul_i32 s83, s%d, 12" % S_S)
    e.i("s_add_u32 s86, s86, s83")
    e.i("s_add_u32 s90, s86, %d" % (64 * 3072))
    e.i("s_mul_i32 s87, s%d, %d" % (S_H, 8192 * 384))
    e.i("s_mul_i32 s83, s%d, %d" % (S_S, 1024 * 384))
    e.i("s_add_u32 s87, s87, s83")
    e.i("s_mul_i32 s83, s%d, %d" % (S_W, 128 * 384))
    e.i("s_add_u32 s87, s87, s83")
    e.i("s_waitcnt lgkmcnt(0)")
    srd(e, S_X, 4, 1280)
    srd(e, S_WG, 16, WG_BYTES)
    srd(e, S_WU, 18, WG_BYTES)
    srd(e, S_WQ, 10, WQ_BYTES)
    srd(e, S_K, 6, KV_BYTES)
    srd(e, S_V, 8, KV_BYTES)
    srd(e, S_WS, 28, WS_BYTES)
    e.i("buffer_load_dwordx4 v[48:51], v6, %s, s84 offen" % S4(S_X), tag="x0")
    e.i("buffer_load_dword v52, v6, %s, s84 offen offset:16" % S4(S_X), tag="x1")
    e.i("buffer_load_ushort v53, v55, %s, s84 offen" % S4(S_X), tag="xa")
    e.i("buffer_load_dwordx3 v[32:34], v7, %s, s86 offen" % S4(S_WG), tag="ga")
    e.i("buffer_load_dwordx3 v[40:42], v7, %s, s86 offen" % S4(S_WU), tag="ua")
    e.i("s_mov_b64 exec, 0xffff")
    e.i("buffer_load_ushort v54, v55, %s, s84 offen offset:128" % S4(S_X), tag="xb")
    e.i("buffer_load_dwordx3 v[36:38], v7, %s, s90 offen" % S4(S_WG), tag="gb")
    e.i("buffer_load_dwordx3 v[44:46], v7, %s, s90 offen" % S4(S_WU), tag="ub")
    e.i("s_mov_b64 exec, -1")
    for i in range(10):
        if i:
            e.i("s_add_u32 s85, s85, 12288")
        for j in range(3):
            e.i("buffer_load_dwordx4 %s, v3, %s, s85 offen offset:%d" % (R(slot(6 + i) + 4 * j, 4), S4(S_WQ), j * 128),
                tag=("wq", i, j))
    for t in range(5):
        kv_loads(e, S_K, t, "k")
    FA = slot(5)
    e.wait_vm("ub")
    e.i("v_lshlrev_b32 v53, 16, v53")
    e.i("v_lshlrev_b32 v54, 16, v54")
    for m, (ra, rb) in enumerate(((32, 36), (40, 44))):
        for k in range(3):
            e.i("v_lshlrev_b32 v56, 16, v%d" % (ra + k))
            e.i("v_and_b32 v57, s%d, v%d" % (S_MASK, ra + k))
            e.i("v_lshlrev_b32 v58, 16, v%d" % (rb + k))
            e.i("v_and_b32 v59, s%d, v%d" % (S_MASK, rb + k))
            e.i("v_mul_f32 v%d, v53, v56" % (FA + m * 6 + 2 * k))
            e.i("v_mul_f32 v%d, v53, v57" % (FA + m * 6 + 2 * k + 1))
            e.i("v_fmac_f32 v%d, v54, v58" % (FA + m * 6 + 2 * k))
            e.i("v_fmac_f32 v%d, v54, v59" % (FA + m * 6 + 2 * k + 1))
    dpp_full_reduce(e, [FA + r for r in range(12)])
    e.i("s_mul_i32 s90, s%d, 48" % S_W)
    e.i("s_add_u32 s90, s90, %d" % L_FFN)
    e.i("v_mov_b32 v60, s90")
    e.i("s_mov_b32 exec_lo, 0")
    e.i("s_mov_b32 exec_hi, 0x80000000")
    for r in range(3):
        e.i("ds_write_b128 v60, %s offset:%d" % (R(FA + 4 * r, 4), 16 * r))
    e.i("s_mov_b64 exec, -1")
    e.i("s_waitcnt lgkmcnt(0)")
    kv_loads(e, S_K, 5, "k")
    temps = list(range(56, 64))
    for i in range(10):
        e.wait_vm(("wq", i, 2))
        if i % 2 == 0:
            e.i("v_lshlrev_b32 v55, 16, v%d" % (48 + i // 2))
        else:
            e.i("v_and_b32 v55, s%d, v%d" % (S_MASK, 48 + i // 2))
        fma_slot(e, slot(6 + i), ACC, 55, temps)
        kv_loads(e, S_K, 6 + i, "k")
    reduce24(e, ACC)
    e.i("v_and_b32 v4, 7, v1")
    e.i("v_lshlrev_b32 v4, 5, v4")
    e.i("v_bfe_u32 v5, v1, 4, 1")
    e.i("v_lshlrev_b32 v5, 3, v5")
    e.i("v_add_u32 v4, v4, v5")
    e.i("v_bfe_u32 v5, v1, 5, 1")
    e.i("v_lshlrev_b32 v5, 2, v5")
    e.i("v_add_u32 v4, v4, v5")
    e.i("s_mul_i32 s90, s%d, 768" % S_W)
    e.i("v_add_u32 v7, s90, v4")
    for k in range(6):
        e.i("ds_write_b32 v7, v%d offset:%d" % (ACC + 4 * k, (k >> 1) * 256 + (k & 1) * 16))
    e.i("s_waitcnt lgkmcnt(0)")
    e.i("s_barrier")
    e.i("s_cmp_ge_u32 s%d, 3" % S_W)
    e.i("s_cbranch_scc1 L_q_notsum")
    e.i("v_lshlrev_b32 v4, 2, v0")
    for w in range(8):
        e.i("ds_read_b32 v%d, v4 offset:%d" % (56 + w, w * 768))
    e.i("s_waitcnt lgkmcnt(0)")
    e.i("v_add_f32 v56, v56, v57")
    e.i("v_add_f32 v58, v58, v59")
    e.i("v_add_f32 v60, v60, v61")
    e.i("v_add_f32 v62, v62, v63")
    e.i("v_add_f32 v56, v56, v58")
    e.i("v_add_f32 v60, v60, v62")
    e.i("v_add_f32 v56, v56, v60")
    e.i("v_cvt_pk_bf16_f32 v56, v56, v56")
    e.i("v_lshlrev_b32 v4, 1, v0")
    e.i("ds_write_b16 v4, v56 offset:%d" % L_QB)
    e.i("s_branch L_q_join")
    e.label("L_q_notsum")
    e.i("s_nop 3")
    e.i("s_cmp_lg_u32 s%d, 3" % S_W)
    e.i("s_cbranch_scc1 L_q_join")
    e.i("v_lshlrev_b32 v4, 2, v1")
    for w in range(8):
        e.i("ds_read_b32 v%d, v4 offset:%d" % (56 + w, L_FFN + w * 48))
    e.i("s_waitcnt lgkmcnt(0)")
    e.i("v_add_f32 v56, v56, v57")
    e.i("v_add_f32 v58, v58, v59")
    e.i("v_add_f32 v60, v60, v61")
    e.i("v_add_f32 v62, v62, v63")
    e.i("v_add_f32 v56, v56, v58")
    e.i("v_add_f32 v60, v60, v62")
    e.i("v_add_f32 v56, v56, v60")
    bf16_round(e, 56, 57)
    e.i("v_mov_b32_dpp v58, v56 row_shl:6 row_mask:0xf bank_mask:0xf bound_ctrl:0")
    e.i("v_mul_f32 v56, v56, v58")
    bf16_round(e, 56, 57)
    e.i("s_lshl_b32 s90, s%d, 3" % S_H)
    e.i("s_add_u32 s90, s90, s%d" % S_S)
    e.i("s_lshl_b32 s90, s90, 10")
    e.i("s_mov_b64 exec, 0x3f")
    e.i("buffer_store_dword v56, v4, %s, s90 offen offset:%d" % (S4(S_WS), 194 * 4))
    e.i("s_mov_b64 exec, -1")
    e.vm_issued -= 1
    e.label("L_q_join")
    e.i("s_nop 3")
    e.i("s_waitcnt lgkmcnt(0)")
    e.i("s_barrier")
    e.i("v_and_b32 v4, 7, v1")
    e.i("v_lshlrev_b32 v4, 4, v4")
    for j in range(3):
        e.i("ds_read_b128 %s, v4 offset:%d" % (R(QR + 4 * j, 4), L_QB + j * 128))
    e.i("s_waitcnt lgkmcnt(0)")
    chains = ((4, 5, 6), (60, 61, 62))
    for t in range(16):
        c = chains[t & 1]
        for j in range(3):
            e.i("v_mov_b32 v%d, 0" % c[j])
        for j in range(3):
            e.wait_vm(("k", t, j))
            for r in range(4):
                e.i("v_dot2c_f32_bf16 v%d, v%d, v%d" % (c[j], slot(t) + 4 * j + r, QR + 4 * j + r))
        kv_loads(e, S_V, t, "v")
        if t:
            p = chains[(t - 1) & 1]
            e.i("v_add_f32 v%d, v%d, v%d" % (SC + t - 1, p[0], p[1]))
            e.i("v_add_f32 v%d, v%d, v%d" % (SC + t - 1, SC + t - 1, p[2]))
    p = chains[1]
    e.i("v_add_f32 v%d, v%d, v%d" % (SC + 15, p[0], p[1]))
    e.i("v_add_f32 v%d, v%d, v%d" % (SC + 15, SC + 15, p[2]))
    for mod in ("quad_perm:[1,0,3,2]", "quad_perm:[2,3,0,1]", "row_half_mirror"):
        for t in range(16):
            e.i("v_add_f32_dpp v%d, v%d, v%d %s row_mask:0xf bank_mask:0xf" % (SC + t, SC + t, SC + t, mod))
    e.i("s_mov_b32 s90, %s" % f32(SCALE))
    for t in range(0, 16, 2):
        bf16_round_pair(e, SC + t, SC + t + 1, 32 + (t >> 1))
    for t in range(16):
        e.i("v_mul_f32 v%d, s90, v%d" % (SC + t, SC + t))
    for t in range(0, 16, 2):
        bf16_round_pair(e, SC + t, SC + t + 1, 32 + (t >> 1))
    e.i("v_max3_f32 v32, v%d, v%d, v%d" % (SC, SC + 1, SC + 2))
    e.i("v_max3_f32 v33, v%d, v%d, v%d" % (SC + 3, SC + 4, SC + 5))
    e.i("v_max3_f32 v34, v%d, v%d, v%d" % (SC + 6, SC + 7, SC + 8))
    e.i("v_max3_f32 v35, v%d, v%d, v%d" % (SC + 9, SC + 10, SC + 11))
    e.i("v_max3_f32 v36, v%d, v%d, v%d" % (SC + 12, SC + 13, SC + 14))
    e.i("v_max3_f32 v32, v32, v33, v%d" % (SC + 15))
    e.i("v_max3_f32 v34, v34, v35, v36")
    e.i("v_max_f32 v32, v32, v34")
    e.i("v_max_f32_dpp v32, v32, v32 row_ror:8 row_mask:0xf bank_mask:0xf")
    e.i("v_mov_b32 v33, v32")
    e.i("v_permlane16_swap_b32 v32, v33")
    e.i("v_max_f32 v32, v32, v33")
    e.i("v_mov_b32 v33, v32")
    e.i("v_permlane32_swap_b32 v32, v33")
    e.i("v_max_f32 v6, v32, v33")
    e.i("s_mov_b32 s90, %s" % f32(LOG2E))
    e.i("v_mul_f32 v33, s90, v6")
    for t in range(16):
        e.i("v_fma_f32 v%d, v%d, s90, -v33" % (SC + t, SC + t))
    for t in range(16):
        e.i("v_exp_f32 v%d, v%d" % (SC + t, SC + t))
    e.i("v_add_f32 v32, v%d, v%d" % (SC, SC + 1))
    e.i("v_add_f32 v33, v%d, v%d" % (SC + 2, SC + 3))
    for t in range(4, 16, 2):
        e.i("v_add_f32 v32, v32, v%d" % (SC + t))
        e.i("v_add_f32 v33, v33, v%d" % (SC + t + 1))
    e.i("v_add_f32 v5, v32, v33")
    for r in range(24):
        e.i("v_mov_b32 v%d, 0" % (ACC + r))
    for t in range(16):
        e.wait_vm(("v", t, 2))
        fma_slot(e, slot(t), ACC, SC + t, list(range(32, 40)))
    reduce24(e, ACC)
    for k in range(6):
        e.i("ds_write_b32 v7, v%d offset:%d" % (ACC + 4 * k, (k >> 1) * 256 + (k & 1) * 16))
    dpp_full_reduce(e, [5])
    e.i("v_mul_f32 v5, 0.125, v5") if False else None
    e.i("s_mov_b32 s90, 0x3e000000")
    e.i("v_mul_f32 v5, s90, v5")
    e.i("s_lshl_b32 s90, s%d, 3" % S_W)
    e.i("s_add_u32 s90, s90, %d" % L_ML)
    e.i("v_mov_b32 v60, s90")
    e.i("v_mov_b32 v4, v6")
    e.i("s_mov_b32 exec_lo, 0")
    e.i("s_mov_b32 exec_hi, 0x80000000")
    e.i("ds_write_b64 v60, v[4:5]")
    e.i("s_mov_b64 exec, -1")
    e.i("s_waitcnt lgkmcnt(0)")
    e.i("s_barrier")
    e.i("s_cmp_ge_u32 s%d, 3" % S_W)
    e.i("s_cbranch_scc1 L_main_exit")
    e.i("v_mov_b32 v4, %d" % L_ML)
    for r in range(4):
        e.i("ds_read_b128 %s, v4 offset:%d" % (R(64 + 4 * r, 4), 16 * r))
    e.i("v_lshlrev_b32 v4, 2, v0")
    for w in range(8):
        e.i("ds_read_b32 v%d, v4 offset:%d" % (56 + w, w * 768))
    e.i("s_waitcnt lgkmcnt(0)")
    e.i("v_max3_f32 v80, v64, v66, v68")
    e.i("v_max3_f32 v81, v70, v72, v74")
    e.i("v_max3_f32 v80, v80, v76, v78")
    e.i("v_max_f32 v80, v80, v81")
    e.i("s_mov_b32 s90, %s" % f32(LOG2E))
    for w in range(8):
        e.i("v_sub_f32 v%d, v%d, v80" % (84 + w, 64 + 2 * w))
    for w in range(8):
        e.i("v_mul_f32 v%d, s90, v%d" % (84 + w, 84 + w))
    for w in range(8):
        e.i("v_exp_f32 v%d, v%d" % (84 + w, 84 + w))
    e.i("v_mul_f32 v82, v84, v56")
    e.i("v_mul_f32 v81, v84, v65")
    for w in range(1, 8):
        e.i("v_fmac_f32 v82, v%d, v%d" % (84 + w, 56 + w))
        e.i("v_fmac_f32 v81, v%d, v%d" % (84 + w, 65 + 2 * w))
    e.i("s_lshl_b32 s90, s%d, 3" % S_H)
    e.i("s_add_u32 s90, s90, s%d" % S_S)
    e.i("s_lshl_b32 s90, s90, 10")
    e.i("buffer_store_dword v82, v4, %s, s90 offen" % S4(S_WS))
    e.i("s_cmp_lg_u32 s%d, 0" % S_W)
    e.i("s_cbranch_scc1 L_main_exit")
    e.i("s_mov_b64 exec, 1")
    e.i("buffer_store_dwordx2 v[80:81], v4, %s, s90 offen offset:768" % S4(S_WS))
    e.label("L_main_exit")
    e.i("s_endpgm")


T_O = 0
T_PA = 1024
T_PB = T_PA + 15360
T_FIN = T_PB + 15360
T_FLAG = T_FIN + 1024
TAIL_LDS = T_FLAG + 64


def tail_kernel(e):
    name = "attn_tail_kernel"
    e.raw(".globl %s" % name)
    e.raw(".p2align 8")
    e.raw(".type %s,@function" % name)
    e.raw("%s:" % name)
    common_prologue(e, "L_tail_exit")
    e.i("v_mul_u32_u24 v4, 205, v1")
    e.i("v_lshrrev_b32 v4, 11, v4")
    e.i("v_mul_u32_u24 v5, 10, v4")
    e.i("v_sub_u32 v5, v1, v5")
    e.i("v_mul_u32_u24 v2, 1280, v4")
    e.i("v_lshlrev_b32 v6, 4, v5")
    e.i("v_add_u32 v2, v2, v6")
    e.i("v_mul_u32_u24 v3, 20, v1")
    e.i("v_lshlrev_b32 v7, 2, v0")
    e.i("s_mul_i32 s84, s%d, 192" % S_H)
    e.i("s_mul_i32 s83, s%d, 24" % S_W)
    e.i("s_add_u32 s84, s84, s83")
    e.i("s_mul_i32 s84, s84, 1280")
    e.i("s_mul_i32 s83, s%d, 160" % S_S)
    e.i("s_add_u32 s84, s84, s83")
    e.i("s_mul_i32 s85, s%d, 48" % S_H)
    e.i("s_mul_i32 s86, s%d, 6" % S_W)
    e.i("s_add_u32 s85, s85, s86")
    e.i("s_mul_i32 s85, s85, 1280")
    e.i("s_add_u32 s85, s85, s83")
    e.i("s_lshl_b32 s86, s%d, 13" % S_H)
    e.i("s_waitcnt lgkmcnt(0)")
    srd(e, S_X, 4, 1280)
    srd(e, S_GW, 22, 1280)
    srd(e, S_WO, 12, WO_BYTES)
    srd(e, S_WD, 20, WD_BYTES)
    srd(e, S_WS, 28, WS_BYTES)
    srd(e, S_OUT, 24, 1280)
    srd(e, S_DBG, 26, 256)
    e.i("v_mov_b32 v8, 768")
    for s in range(8):
        e.i("s_add_u32 s87, s86, %d" % (s * 1024))
        e.i("buffer_load_dwordx2 %s, v8, %s, s87 offen" % (R(64 + 2 * s, 2), S4(S_WS)), tag=("ml", s))
    e.i("v_subrev_u32 v9, 192, v0")
    e.i("v_mul_u32_u24 v10, 43, v9")
    e.i("v_lshrrev_b32 v10, 8, v10")
    e.i("v_mul_u32_u24 v11, 6, v10")
    e.i("v_sub_u32 v11, v9, v11")
    e.i("v_lshlrev_b32 v10, 10, v10")
    e.i("v_lshlrev_b32 v11, 2, v11")
    e.i("v_add3_u32 v10, v10, v11, 0") if False else None
    e.i("v_add_u32 v10, v10, v11")
    e.i("v_add_u32 v10, %d, v10" % (194 * 4))
    for s in range(8):
        e.i("s_add_u32 s87, s86, %d" % (s * 1024))
        e.i("buffer_load_dword v%d, v7, %s, s87 offen" % (80 + s, S4(S_WS)), tag=("o", s))
    e.i("buffer_load_dword v88, v10, %s, s86 offen" % S4(S_WS), tag="h")
    e.i("s_mov_b32 exec_lo, -1")
    e.i("s_mov_b32 exec_hi, 0x0fffffff")
    for i in range(4):
        e.i("buffer_load_dwordx4 %s, v2, %s, s84 offen" % (R(96 + 4 * i, 4), S4(S_WO)), tag=("wo", i))
        if i < 3:
            e.i("s_add_u32 s84, s84, %d" % (6 * 1280))
    e.i("buffer_load_dwordx4 %s, v2, %s, s85 offen" % (R(112, 4), S4(S_WD)), tag="wd")
    e.i("s_mov_b64 exec, -1")
    e.i("buffer_load_dwordx4 v[16:19], v3, %s, 0 offen" % S4(S_X), tag="gx0")
    e.i("buffer_load_dword v20, v3, %s, 0 offen offset:16" % S4(S_X), tag="gx1")
    e.i("buffer_load_dwordx4 v[24:27], v3, %s, 0 offen" % S4(S_GW), tag="gw0")
    e.i("buffer_load_dword v28, v3, %s, 0 offen offset:16" % S4(S_GW), tag="gw1")
    e.wait_vm("h")
    e.i("v_max3_f32 v30, v64, v66, v68")
    e.i("v_max3_f32 v31, v70, v72, v74")
    e.i("v_max3_f32 v30, v30, v76, v78")
    e.i("v_max_f32 v30, v30, v31")
    e.i("s_mov_b32 s90, %s" % f32(LOG2E))
    for s in range(8):
        e.i("v_sub_f32 v%d, v%d, v30" % (32 + s, 64 + 2 * s))
    for s in range(8):
        e.i("v_mul_f32 v%d, s90, v%d" % (32 + s, 32 + s))
    for s in range(8):
        e.i("v_exp_f32 v%d, v%d" % (32 + s, 32 + s))
    e.i("v_mul_f32 v40, v32, v80")
    e.i("v_mul_f32 v41, v32, v65")
    for s in range(1, 8):
        e.i("v_fmac_f32 v40, v%d, v%d" % (32 + s, 80 + s))
        e.i("v_fmac_f32 v41, v%d, v%d" % (32 + s, 65 + 2 * s))
    e.i("v_rcp_f32 v42, v41")
    e.i("v_mul_f32 v43, v40, v42")
    e.i("v_fma_f32 v44, -v43, v41, v40")
    e.i("v_fmac_f32 v43, v44, v42")
    bf16_round(e, 43, 44)
    e.i("v_cmp_gt_u32 vcc, 192, v0")
    e.i("v_cndmask_b32 v43, v88, v43, vcc")
    e.i("v_cmp_gt_u32 vcc, 240, v0")
    e.i("s_and_saveexec_b64 s[92:93], vcc")
    e.i("ds_write_b32 v7, v43 offset:%d" % T_O)
    e.i("s_mov_b64 exec, -1")
    e.wait_vm("gw1")
    for k in range(5):
        e.i("v_lshlrev_b32 v44, 16, v%d" % (16 + k))
        e.i("v_and_b32 v45, s%d, v%d" % (S_MASK, 16 + k))
        e.i("v_lshlrev_b32 v46, 16, v%d" % (24 + k))
        e.i("v_and_b32 v47, s%d, v%d" % (S_MASK, 24 + k))
        e.i("v_mul_f32 v44, v44, v46")
        e.i("v_mul_f32 v45, v45, v47")
        bf16_round_pair(e, 44, 45, 46)
        if k == 0:
            e.i("v_add_f32 v48, v44, v45")
        else:
            e.i("v_add_f32 v48, v48, v44")
            e.i("v_add_f32 v48, v48, v45")
    dpp_full_reduce(e, [48])
    bf16_round(e, 48, 44)
    e.i("v_mul_f32 v48, s90, v48")
    e.i("v_exp_f32 v48, -v48")
    e.i("v_add_f32 v48, 1.0, v48")
    e.i("v_rcp_f32 v48, v48")
    bf16_round(e, 48, 44)
    e.i("v_readlane_b32 s91, v48, 63")
    e.i("s_waitcnt lgkmcnt(0)")
    e.i("s_barrier")
    e.i("s_mul_i32 s90, s%d, 96" % S_W)
    e.i("v_lshlrev_b32 v8, 2, v4")
    e.i("v_add_u32 v9, s90, v8")
    for i in range(4):
        e.i("ds_read_b32 v%d, v9 offset:%d" % (50 + i, T_O + 24 * i))
    e.i("s_mul_i32 s90, s%d, 24" % S_W)
    e.i("v_add_u32 v9, s90, v8")
    e.i("ds_read_b32 v54, v9 offset:%d" % (T_O + 768))
    e.i("s_waitcnt lgkmcnt(0)")
    A, B = 120, 128
    for i in range(4):
        e.wait_vm(("wo", i))
        for k in range(4):
            e.i("v_lshlrev_b32 v44, 16, v%d" % (96 + 4 * i + k))
            e.i("v_and_b32 v45, s%d, v%d" % (S_MASK, 96 + 4 * i + k))
            op = "v_mul_f32" if i == 0 else "v_fmac_f32"
            e.i("%s v%d, v%d, v44" % (op, A + 2 * k, 50 + i))
            e.i("%s v%d, v%d, v45" % (op, A + 2 * k + 1, 50 + i))
    e.wait_vm("wd")
    for k in range(4):
        e.i("v_lshlrev_b32 v44, 16, v%d" % (112 + k))
        e.i("v_and_b32 v45, s%d, v%d" % (S_MASK, 112 + k))
        e.i("v_mul_f32 v%d, v54, v44" % (B + 2 * k))
        e.i("v_mul_f32 v%d, v54, v45" % (B + 2 * k + 1))
    e.i("s_mul_i32 s90, s%d, %d" % (S_W, 6 * 320))
    e.i("v_mul_u32_u24 v8, 320, v4")
    e.i("v_lshlrev_b32 v9, 5, v5")
    e.i("v_add3_u32 v8, v8, v9, s90")
    e.i("s_mov_b32 exec_hi, 0x0fffffff")
    e.i("ds_write_b128 v8, %s offset:%d" % (R(A, 4), T_PA))
    e.i("ds_write_b128 v8, %s offset:%d" % (R(A + 4, 4), T_PA + 16))
    e.i("ds_write_b128 v8, %s offset:%d" % (R(B, 4), T_PB))
    e.i("ds_write_b128 v8, %s offset:%d" % (R(B + 4, 4), T_PB + 16))
    e.i("s_mov_b64 exec, -1")
    e.i("s_waitcnt lgkmcnt(0)")
    e.i("s_barrier")
    e.i("s_cmp_ge_u32 s%d, 3" % S_W)
    e.i("s_cbranch_scc1 L_tail_sync")
    e.i("v_cmp_le_u32 vcc, 80, v0")
    e.i("v_mov_b32 v8, 0")
    e.i("v_mov_b32 v9, %d" % (15360 - 320))
    e.i("v_cndmask_b32 v8, v8, v9, vcc")
    e.i("v_add_u32 v8, v8, v7")
    for sl in range(48):
        e.i("ds_read_b32 v%d, v8 offset:%d" % (140 + sl, T_PA + sl * 320))
    e.i("s_waitcnt lgkmcnt(0)")
    for st in (24, 12, 6, 3):
        for k in range(st):
            e.i("v_add_f32 v%d, v%d, v%d" % (140 + k, 140 + k, 140 + k + st))
    e.i("v_add_f32 v140, v140, v141")
    e.i("v_add_f32 v140, v140, v142")
    e.i("s_lshl_b32 s90, s%d, 5" % S_S)
    e.i("s_add_u32 s90, s90, s%d" % S_H)
    e.i("s_mul_i32 s90, s90, 640")
    e.i("s_add_u32 s90, s90, %d" % PART_OFF)
    e.i("v_cmp_gt_u32 vcc, 160, v0")
    e.i("s_and_saveexec_b64 s[92:93], vcc")
    e.i("buffer_store_dword v140, v7, %s, s90 offen sc0 sc1" % S4(S_WS))
    e.i("s_mov_b64 exec, -1")
    e.label("L_tail_sync")
    e.i("s_nop 3")
    e.i("s_waitcnt vmcnt(0)")
    e.i("s_barrier")
    e.i("s_cmp_lg_u32 s%d, 0" % S_W)
    e.i("s_cbranch_scc1 L_tail_w")
    e.i("s_mov_b64 exec, 1")
    e.i("v_mov_b32 v8, 1")
    e.i("s_lshl_b32 s90, s%d, 2" % S_S)
    e.i("v_mov_b32 v9, s90")
    e.i("buffer_atomic_add v8, v9, %s, 0 offen sc0 sc1" % S4(S_DBG))
    e.i("s_waitcnt vmcnt(0)")
    e.i("v_mov_b32 v9, %d" % T_FLAG)
    e.i("ds_write_b32 v9, v8")
    e.i("s_mov_b64 exec, -1")
    e.label("L_tail_w")
    e.i("s_nop 3")
    e.i("s_waitcnt lgkmcnt(0)")
    e.i("s_barrier")
    e.i("v_mov_b32 v9, %d" % T_FLAG)
    e.i("ds_read_b32 v8, v9")
    e.i("s_waitcnt lgkmcnt(0)")
    e.i("v_readfirstlane_b32 s90, v8")
    e.i("s_cmp_lg_u32 s90, 31")
    e.i("s_cbranch_scc1 L_tail_exit")
    e.i("s_cmp_ge_u32 s%d, 3" % S_W)
    e.i("s_cbranch_scc1 L_tail_fin2")
    e.i("s_mul_i32 s90, s%d, %d" % (S_S, 32 * 640))
    e.i("s_add_u32 s90, s90, %d" % PART_OFF)
    for hh in range(32):
        e.i("buffer_load_dword v%d, v7, %s, s90 offen sc0 sc1" % (140 + hh, S4(S_WS)))
        if hh < 31:
            e.i("s_add_u32 s90, s90, 640")
    e.i("s_waitcnt vmcnt(0)")
    for st in (16, 8, 4, 2, 1):
        for k in range(st):
            e.i("v_add_f32 v%d, v%d, v%d" % (140 + k, 140 + k, 140 + k + st))
    bf16_round(e, 140, 141)
    e.i("ds_write_b32 v7, v140 offset:%d" % T_FIN)
    e.label("L_tail_fin2")
    e.i("s_nop 3")
    e.i("s_waitcnt lgkmcnt(0)")
    e.i("s_barrier")
    e.i("s_cmp_ge_u32 s%d, 2" % S_W)
    e.i("s_cbranch_scc1 L_tail_exit")
    e.i("ds_read_b32 v8, v7 offset:%d" % T_FIN)
    e.i("ds_read_b32 v9, v7 offset:%d" % (T_FIN + 320))
    e.i("s_waitcnt lgkmcnt(0)")
    e.i("v_mul_f32 v8, s91, v8")
    e.i("v_sub_f32 v10, 1.0, s91") if False else None
    e.i("v_mov_b32 v10, s91")
    e.i("v_sub_f32 v10, 1.0, v10")
    bf16_round(e, 10, 11)
    e.i("v_mul_f32 v9, v10, v9")
    bf16_round_pair(e, 8, 9, 11)
    e.i("v_add_f32 v8, v8, v9")
    e.i("v_cvt_pk_bf16_f32 v8, v8, v8")
    e.i("s_mul_i32 s90, s%d, 160" % S_S)
    e.i("v_lshlrev_b32 v9, 1, v0")
    e.i("v_cmp_gt_u32 vcc, 80, v0")
    e.i("s_and_saveexec_b64 s[92:93], vcc")
    e.i("buffer_store_short v8, v9, %s, s90 offen" % S4(S_OUT))
    e.label("L_tail_exit")
    e.i("s_endpgm")


def descriptor(name, vgpr, sgpr=102):
    acc = (vgpr + 3) // 4 * 4
    return """.p2align 6
.amdhsa_kernel %s
  .amdhsa_next_free_vgpr %d
  .amdhsa_next_free_sgpr %d
  .amdhsa_accum_offset %d
  .amdhsa_group_segment_fixed_size 0
  .amdhsa_kernarg_size 104
  .amdhsa_user_sgpr_count 2
  .amdhsa_user_sgpr_kernarg_segment_ptr 1
  .amdhsa_system_sgpr_workgroup_id_x 1
.end_amdhsa_kernel
""" % (name, vgpr, sgpr, acc)


def main():
    ref = open(OUT + ".ref").read().splitlines()
    head = []
    for ln in ref:
        if ln.startswith(";") and "@launch" not in ln:
            head.append(ln)
        elif ln.startswith(";"):
            continue
        else:
            break
    e1 = Emit()
    main_kernel(e1)
    e2 = Emit()
    tail_kernel(e2)
    txt = "\n".join(head) + "\n"
    txt += "; @launch kernel=attn_main_kernel grid=(256,1,1) block=(512,1,1) lds=%d\n" % MAIN_LDS
    txt += "; @launch kernel=attn_tail_kernel grid=(256,1,1) block=(512,1,1) lds=%d\n" % (TAIL_LDS + 256)
    txt += '.amdgcn_target "amdgcn-amd-amdhsa--gfx950"\n.text\n'
    txt += e1.text() + e2.text()
    txt += '.section .rodata,"a"\n'
    txt += descriptor("attn_main_kernel", 256) + descriptor("attn_tail_kernel", 192)
    open(OUT, "w").write(txt)


if __name__ == "__main__":
    main()
```

```python
import struct
import sys

sys.path.insert(0, "gen")
from emit import Emit

OUT = "gated_mix__gqa_block_cached__glu_gated_bilinear__decode.s"


def f32(x):
    return "0x%08x" % struct.unpack("<I", struct.pack("<f", x))[0]


LOG2E = 1.4426950408889634
SCALE = 192 ** -0.5

KV_BYTES = 100663296
WQ_BYTES = 640 * 6144 * 2
WO_BYTES = 6144 * 640 * 2
WG_BYTES = 640 * 1536 * 2
WD_BYTES = 1536 * 640 * 2
WS_BYTES = 402653184
PART_OFF = 0x100000

S_K, S_V, S_WQ, S_X, S_WG, S_WU, S_WS, S_WO, S_WD, S_GW, S_OUT, S_DBG = (
    32, 36, 40, 44, 48, 52, 56, 60, 64, 68, 72, 76)
S_H, S_S, S_W = 80, 81, 82
S_MASK = 89

NT = " nt"
STAMPS = False
STAMP_OFF = 0x800000


STAMP_REGS = [92, 94, 96, 98, 100, 4, 6, 8, 10, 12, 14, 16, 18, 20, 22, 24, 26]


def stamp(e, n):
    if STAMPS:
        e.i("s_memrealtime s[%d:%d]" % (STAMP_REGS[n], STAMP_REGS[n] + 1))


def stamp_store(e, nst, kidx, va=250, vb=251):
    if not STAMPS:
        return
    e.i("s_waitcnt lgkmcnt(0)")
    e.i("s_lshl_b32 s90, s2, 3")
    e.i("s_add_u32 s90, s90, s%d" % S_W)
    e.i("s_lshl_b32 s90, s90, 6")
    e.i("s_add_u32 s90, s90, %d" % (STAMP_OFF + kidx * 0x100000))
    e.i("s_mov_b64 exec, 1")
    e.i("v_mov_b32 v%d, 0" % va)
    for n in range(nst):
        e.i("v_mov_b32 v%d, s%d" % (vb, STAMP_REGS[n]))
        e.i("buffer_store_dword v%d, v%d, %s, s90 offen offset:%d" % (vb, va, S4(S_WS), 4 * n))
    e.i("s_mov_b64 exec, -1")


def srd(e, base, ptr, nbytes):
    e.i("s_mov_b32 s%d, s%d" % (base, ptr))
    e.i("s_and_b32 s%d, s%d, 0xffff" % (base + 1, ptr + 1))
    e.i("s_mov_b32 s%d, %d" % (base + 2, nbytes))
    e.i("s_mov_b32 s%d, 0x00020000" % (base + 3))


def R(a, n):
    return "v[%d:%d]" % (a, a + n - 1)


def S4(a):
    return "s[%d:%d]" % (a, a + 3)


def common_prologue(e, exit_label):
    e.i("s_cmp_ge_u32 s2, 256")
    e.i("s_cbranch_scc1 %s" % exit_label)
    e.i("s_load_dwordx16 s[4:19], s[0:1], 0")
    e.i("s_load_dwordx8 s[20:27], s[0:1], 64")
    e.i("s_load_dwordx2 s[28:29], s[0:1], 96")
    e.i("v_and_b32 v1, 63, v0")
    e.i("v_lshrrev_b32 v4, 6, v0")
    e.i("v_readfirstlane_b32 s%d, v4" % S_W)
    e.i("s_and_b32 s%d, s2, 7" % S_H)
    e.i("s_lshl_b32 s%d, s%d, 2" % (S_H, S_H))
    e.i("s_lshr_b32 s%d, s2, 3" % S_S)
    e.i("s_and_b32 s83, s%d, 3" % S_S)
    e.i("s_add_u32 s%d, s%d, s83" % (S_H, S_H))
    e.i("s_lshr_b32 s%d, s2, 5" % S_S)
    e.i("s_mov_b32 s%d, 0xffff0000" % S_MASK)


def dpp_full_reduce(e, regs):
    for mod in ("row_shr:1 row_mask:0xf bank_mask:0xf bound_ctrl:0",
                "row_shr:2 row_mask:0xf bank_mask:0xf bound_ctrl:0",
                "row_shr:4 row_mask:0xf bank_mask:0xf bound_ctrl:0",
                "row_shr:8 row_mask:0xf bank_mask:0xf bound_ctrl:0",
                "row_bcast:15 row_mask:0xa bank_mask:0xf",
                "row_bcast:31 row_mask:0xc bank_mask:0xf"):
        for r in regs:
            e.i("v_add_f32_dpp v%d, v%d, v%d %s" % (r, r, r, mod))


def reduce24(e, acc):
    for i in range(12):
        e.i("v_permlane32_swap_b32 v%d, v%d" % (acc + 2 * i, acc + 2 * i + 1))
    for i in range(12):
        e.i("v_add_f32 v%d, v%d, v%d" % (acc + 2 * i, acc + 2 * i, acc + 2 * i + 1))
    for k in range(6):
        e.i("v_permlane16_swap_b32 v%d, v%d" % (acc + 4 * k, acc + 4 * k + 2))
    for k in range(6):
        e.i("v_add_f32 v%d, v%d, v%d" % (acc + 4 * k, acc + 4 * k, acc + 4 * k + 2))
    for k in range(6):
        e.i("v_add_f32_dpp v%d, v%d, v%d row_ror:8 row_mask:0xf bank_mask:0xf" % (acc + 4 * k, acc + 4 * k, acc + 4 * k))


def fma_slot(e, base, acc, coef, temps):
    nt = len(temps)
    for k in range(12):
        t0 = temps[(2 * k) % nt]
        t1 = temps[(2 * k + 1) % nt]
        e.i("v_lshlrev_b32 v%d, 16, v%d" % (t0, base + k))
        e.i("v_and_b32 v%d, s%d, v%d" % (t1, S_MASK, base + k))
        e.i("v_fmac_f32 v%d, v%d, v%d" % (acc + 2 * k, coef, t0))
        e.i("v_fmac_f32 v%d, v%d, v%d" % (acc + 2 * k + 1, coef, t1))


def bf16_round_pair(e, a, b, t):
    e.i("v_cvt_pk_bf16_f32 v%d, v%d, v%d" % (t, a, b))
    e.i("v_lshlrev_b32 v%d, 16, v%d" % (a, t))
    e.i("v_and_b32 v%d, s%d, v%d" % (b, S_MASK, t))


def bf16_round(e, a, t):
    e.i("v_cvt_pk_bf16_f32 v%d, v%d, v%d" % (t, a, a))
    e.i("v_lshlrev_b32 v%d, 16, v%d" % (a, t))


L_RED = 0
L_FFN = 6144
L_QB = 6528
L_ML = 6912
MAIN_LDS = 7168

ACC = 8
QR = 32
SC = 44
SLOT0 = 64


def slot(t):
    return SLOT0 + 12 * t


def kv_loads(e, srdbase, t, tagp):
    e.i("s_add_u32 s88, s87, %d" % (t * 3072))
    for j in range(3):
        e.i("buffer_load_dwordx4 %s, v2, %s, s88 offen offset:%d%s" % (R(slot(t) + 4 * j, 4), S4(srdbase), j * 128, NT),
            tag=(tagp, t, j))


FLAG_OFF = 0x200000
KNAME = "gated_mix__gqa_block_cached__glu_gated_bilinear__decode_kernel"

T_O = 8192
T_PA = T_O + 1024
T_PB = T_PA + 15360
T_FIN = T_PB + 15360
T_FLAG = T_FIN + 1024
FUSED_LDS = T_FLAG + 64


def fused_kernel(e):
    name = KNAME
    e.raw(".globl %s" % name)
    e.raw(".p2align 8")
    e.raw(".type %s,@function" % name)
    e.raw("%s:" % name)
    common_prologue(e, "L_exit")
    e.i("v_lshrrev_b32 v4, 3, v1")
    e.i("v_and_b32 v5, 7, v1")
    e.i("v_lshlrev_b32 v5, 4, v5")
    e.i("v_mul_u32_u24 v2, 0x180, v4")
    e.i("v_add_u32 v2, v2, v5")
    e.i("v_mul_u32_u24 v3, %d, v4" % (10 * 12288))
    e.i("v_add_u32 v3, v3, v5")
    e.i("v_mul_u32_u24 v6, 20, v4")
    e.i("v_mul_u32_u24 v7, 3072, v1")
    e.i("v_lshlrev_b32 v55, 1, v1")
    for r in (36, 37, 38, 44, 45, 46, 54, 60):
        e.i("v_mov_b32 v%d, 0" % r)
    for r in range(24):
        e.i("v_mov_b32 v%d, 0" % (ACC + r))
    e.i("s_mul_i32 s84, s%d, 160" % S_W)
    e.i("s_mul_i32 s85, s%d, %d" % (S_W, 80 * 12288))
    e.i("s_mul_i32 s83, s%d, 384" % S_H)
    e.i("s_add_u32 s85, s85, s83")
    e.i("s_mul_i32 s86, s%d, %d" % (S_W, 80 * 3072))
    e.i("s_mul_i32 s83, s%d, 96" % S_H)
    e.i("s_add_u32 s86, s86, s83")
    e.i("s_mul_i32 s83, s%d, 12" % S_S)
    e.i("s_add_u32 s86, s86, s83")
    e.i("s_add_u32 s90, s86, %d" % (64 * 3072))
    e.i("s_mul_i32 s87, s%d, %d" % (S_H, 8192 * 384))
    e.i("s_mul_i32 s83, s%d, %d" % (S_S, 1024 * 384))
    e.i("s_add_u32 s87, s87, s83")
    e.i("s_mul_i32 s83, s%d, %d" % (S_W, 128 * 384))
    e.i("s_add_u32 s87, s87, s83")
    e.i("s_waitcnt lgkmcnt(0)")
    stamp(e, 0)
    srd(e, S_X, 4, 1280)
    srd(e, S_WG, 16, WG_BYTES)
    srd(e, S_WU, 18, WG_BYTES)
    srd(e, S_WQ, 10, WQ_BYTES)
    srd(e, S_K, 6, KV_BYTES)
    srd(e, S_V, 8, KV_BYTES)
    srd(e, S_WS, 28, WS_BYTES)
    srd(e, S_GW, 22, 1280)
    srd(e, S_WO, 12, WO_BYTES)
    srd(e, S_WD, 20, WD_BYTES)
    srd(e, S_OUT, 24, 1280)
    srd(e, S_DBG, 26, 256)
    e.i("s_lshl_b32 s91, s%d, 8" % S_H)
    e.i("s_lshl_b32 s83, s%d, 2" % S_S)
    e.i("s_add_u32 s91, s91, s83")
    e.i("s_add_u32 s91, s91, %d" % FLAG_OFF)
    e.i("s_mov_b32 s3, s91")
    e.i("s_mov_b64 exec, 1")
    e.i("buffer_store_dword v60, v60, %s, s3 offen sc0 sc1" % S4(S_WS), tag="clr")
    e.i("s_mov_b64 exec, -1")
    e.i("buffer_load_dwordx4 v[48:51], v6, %s, s84 offen" % S4(S_X), tag="x0")
    e.i("buffer_load_dword v52, v6, %s, s84 offen offset:16" % S4(S_X), tag="x1")
    e.i("buffer_load_ushort v53, v55, %s, s84 offen" % S4(S_X), tag="xa")
    e.i("buffer_load_dwordx3 v[32:34], v7, %s, s86 offen" % S4(S_WG), tag="ga")
    e.i("buffer_load_dwordx3 v[40:42], v7, %s, s86 offen" % S4(S_WU), tag="ua")
    e.i("s_mov_b64 exec, 0xffff")
    e.i("buffer_load_ushort v54, v55, %s, s84 offen offset:128" % S4(S_X), tag="xb")
    e.i("buffer_load_dwordx3 v[36:38], v7, %s, s90 offen" % S4(S_WG), tag="gb")
    e.i("buffer_load_dwordx3 v[44:46], v7, %s, s90 offen" % S4(S_WU), tag="ub")
    e.i("s_mov_b64 exec, -1")
    for i in range(10):
        if i:
            e.i("s_add_u32 s85, s85, 12288")
        for j in range(3):
            e.i("buffer_load_dwordx4 %s, v3, %s, s85 offen offset:%d" % (R(slot(6 + i) + 4 * j, 4), S4(S_WQ), j * 128),
                tag=("wq", i, j))
    for t in range(KPRE):
        kv_loads(e, S_K, t, "k")
    FA = slot(5)
    e.wait_vm("ub")
    e.i("v_lshlrev_b32 v53, 16, v53")
    e.i("v_lshlrev_b32 v54, 16, v54")
    for m, (ra, rb) in enumerate(((32, 36), (40, 44))):
        for k in range(3):
            e.i("v_lshlrev_b32 v56, 16, v%d" % (ra + k))
            e.i("v_and_b32 v57, s%d, v%d" % (S_MASK, ra + k))
            e.i("v_lshlrev_b32 v58, 16, v%d" % (rb + k))
            e.i("v_and_b32 v59, s%d, v%d" % (S_MASK, rb + k))
            e.i("v_mul_f32 v%d, v53, v56" % (FA + m * 6 + 2 * k))
            e.i("v_mul_f32 v%d, v53, v57" % (FA + m * 6 + 2 * k + 1))
            e.i("v_fmac_f32 v%d, v54, v58" % (FA + m * 6 + 2 * k))
            e.i("v_fmac_f32 v%d, v54, v59" % (FA + m * 6 + 2 * k + 1))
    dpp_full_reduce(e, [FA + r for r in range(12)])
    e.i("s_mul_i32 s90, s%d, 48" % S_W)
    e.i("s_add_u32 s90, s90, %d" % L_FFN)
    e.i("v_mov_b32 v60, s90")
    e.i("s_mov_b32 exec_lo, 0")
    e.i("s_mov_b32 exec_hi, 0x80000000")
    for r in range(3):
        e.i("ds_write_b128 v60, %s offset:%d" % (R(FA + 4 * r, 4), 16 * r))
    e.i("s_mov_b64 exec, -1")
    e.i("s_waitcnt lgkmcnt(0)")
    temps = list(range(56, 64))
    late = list(range(KPRE, 6))
    for i in range(10):
        e.wait_vm(("wq", i, 2))
        if i % 2 == 0:
            e.i("v_lshlrev_b32 v55, 16, v%d" % (48 + i // 2))
        else:
            e.i("v_and_b32 v55, s%d, v%d" % (S_MASK, 48 + i // 2))
        fma_slot(e, slot(6 + i), ACC, 55, temps)
        if not KLATE:
            if i == 0:
                for t in late:
                    kv_loads(e, S_K, t, "k")
            kv_loads(e, S_K, 6 + i, "k")
    if KLATE:
        for t in late + list(range(6, 16)):
            kv_loads(e, S_K, t, "k")
    reduce24(e, ACC)
    e.i("v_and_b32 v4, 7, v1")
    e.i("v_lshlrev_b32 v4, 5, v4")
    e.i("v_bfe_u32 v5, v1, 4, 1")
    e.i("v_lshlrev_b32 v5, 3, v5")
    e.i("v_add_u32 v4, v4, v5")
    e.i("v_bfe_u32 v5, v1, 5, 1")
    e.i("v_lshlrev_b32 v5, 2, v5")
    e.i("v_add_u32 v4, v4, v5")
    e.i("s_mul_i32 s90, s%d, 768" % S_W)
    e.i("v_add_u32 v7, s90, v4")
    for k in range(6):
        e.i("ds_write_b32 v7, v%d offset:%d" % (ACC + 4 * k, (k >> 1) * 256 + (k & 1) * 16))
    e.i("s_waitcnt lgkmcnt(0)")
    e.i("s_barrier")
    e.i("s_cmp_ge_u32 s%d, 3" % S_W)
    e.i("s_cbranch_scc1 L_q_notsum")
    e.i("v_lshlrev_b32 v4, 2, v0")
    for w in range(8):
        e.i("ds_read_b32 v%d, v4 offset:%d" % (56 + w, w * 768))
    e.i("s_waitcnt lgkmcnt(0)")
    for a, b in ((56, 57), (58, 59), (60, 61), (62, 63), (56, 58), (60, 62), (56, 60)):
        e.i("v_add_f32 v%d, v%d, v%d" % (a, a, b))
    e.i("v_cvt_pk_bf16_f32 v56, v56, v56")
    e.i("v_lshlrev_b32 v4, 1, v0")
    e.i("ds_write_b16 v4, v56 offset:%d" % L_QB)
    e.i("s_branch L_q_join")
    e.label("L_q_notsum")
    e.i("s_nop 3")
    e.i("s_cmp_eq_u32 s%d, 3" % S_W)
    e.i("s_cbranch_scc1 L_q_ffn")
    e.i("s_cmp_lg_u32 s%d, 4" % S_W)
    e.i("s_cbranch_scc1 L_q_join")
    e.i("s_mov_b64 exec, 1")
    e.i("v_mov_b32 v56, 1")
    e.i("s_lshl_b32 s90, s%d, 2" % S_H)
    e.i("v_mov_b32 v57, s90")
    e.i("buffer_atomic_add v56, v57, %s, 0 offen sc1" % S4(S_DBG))
    e.vm_issued -= 1
    e.i("s_mov_b64 exec, -1")
    e.i("s_branch L_q_join")
    e.label("L_q_ffn")
    e.i("s_nop 3")
    e.i("v_lshlrev_b32 v4, 2, v1")
    for w in range(8):
        e.i("ds_read_b32 v%d, v4 offset:%d" % (56 + w, L_FFN + w * 48))
    e.i("s_waitcnt lgkmcnt(0)")
    for a, b in ((56, 57), (58, 59), (60, 61), (62, 63), (56, 58), (60, 62), (56, 60)):
        e.i("v_add_f32 v%d, v%d, v%d" % (a, a, b))
    bf16_round(e, 56, 57)
    e.i("v_mov_b32_dpp v58, v56 row_shl:6 row_mask:0xf bank_mask:0xf bound_ctrl:0")
    e.i("v_mul_f32 v56, v56, v58")
    bf16_round(e, 56, 57)
    e.i("s_lshl_b32 s90, s%d, 3" % S_H)
    e.i("s_add_u32 s90, s90, s%d" % S_S)
    e.i("s_lshl_b32 s90, s90, 10")
    e.i("s_mov_b64 exec, 0x3f")
    e.i("buffer_store_dword v56, v4, %s, s90 offen offset:%d sc0 sc1" % (S4(S_WS), 194 * 4))
    e.i("s_mov_b64 exec, -1")
    e.vm_issued -= 1
    e.label("L_q_join")
    e.i("s_nop 3")
    e.i("s_waitcnt lgkmcnt(0)")
    e.i("s_barrier")
    e.i("v_and_b32 v4, 7, v1")
    e.i("v_lshlrev_b32 v4, 4, v4")
    for j in range(3):
        e.i("ds_read_b128 %s, v4 offset:%d" % (R(QR + 4 * j, 4), L_QB + j * 128))
    e.i("s_waitcnt lgkmcnt(0)")
    stamp(e, 1)
    chains = ((4, 5, 6), (60, 61, 62))
    for t in range(16):
        c = chains[t & 1]
        for j in range(3):
            e.i("v_mov_b32 v%d, 0" % c[j])
        for j in range(3):
            e.wait_vm(("k", t, j))
            for r in range(4):
                e.i("v_dot2c_f32_bf16 v%d, v%d, v%d" % (c[j], slot(t) + 4 * j + r, QR + 4 * j + r))
        kv_loads(e, S_V, t, "v")
        if t:
            p = chains[(t - 1) & 1]
            e.i("v_add_f32 v%d, v%d, v%d" % (SC + t - 1, p[0], p[1]))
            e.i("v_add_f32 v%d, v%d, v%d" % (SC + t - 1, SC + t - 1, p[2]))
    stamp(e, 2)
    p = chains[1]
    e.i("v_add_f32 v%d, v%d, v%d" % (SC + 15, p[0], p[1]))
    e.i("v_add_f32 v%d, v%d, v%d" % (SC + 15, SC + 15, p[2]))
    for mod in ("quad_perm:[1,0,3,2]", "quad_perm:[2,3,0,1]", "row_half_mirror"):
        for t in range(16):
            e.i("v_add_f32_dpp v%d, v%d, v%d %s row_mask:0xf bank_mask:0xf" % (SC + t, SC + t, SC + t, mod))
    e.i("s_mov_b32 s90, %s" % f32(SCALE))
    for t in range(0, 16, 2):
        bf16_round_pair(e, SC + t, SC + t + 1, 32 + (t >> 1))
    for t in range(16):
        e.i("v_mul_f32 v%d, s90, v%d" % (SC + t, SC + t))
    for t in range(0, 16, 2):
        bf16_round_pair(e, SC + t, SC + t + 1, 32 + (t >> 1))
    e.i("v_max3_f32 v32, v%d, v%d, v%d" % (SC, SC + 1, SC + 2))
    e.i("v_max3_f32 v33, v%d, v%d, v%d" % (SC + 3, SC + 4, SC + 5))
    e.i("v_max3_f32 v34, v%d, v%d, v%d" % (SC + 6, SC + 7, SC + 8))
    e.i("v_max3_f32 v35, v%d, v%d, v%d" % (SC + 9, SC + 10, SC + 11))
    e.i("v_max3_f32 v36, v%d, v%d, v%d" % (SC + 12, SC + 13, SC + 14))
    e.i("v_max3_f32 v32, v32, v33, v%d" % (SC + 15))
    e.i("v_max3_f32 v34, v34, v35, v36")
    e.i("v_max_f32 v32, v32, v34")
    e.i("v_max_f32_dpp v32, v32, v32 row_ror:8 row_mask:0xf bank_mask:0xf")
    e.i("v_mov_b32 v33, v32")
    e.i("v_permlane16_swap_b32 v32, v33")
    e.i("v_max_f32 v32, v32, v33")
    e.i("v_mov_b32 v33, v32")
    e.i("v_permlane32_swap_b32 v32, v33")
    e.i("v_max_f32 v6, v32, v33")
    e.i("s_mov_b32 s90, %s" % f32(LOG2E))
    e.i("v_mul_f32 v33, s90, v6")
    for t in range(16):
        e.i("v_fma_f32 v%d, v%d, s90, -v33" % (SC + t, SC + t))
    for t in range(16):
        e.i("v_exp_f32 v%d, v%d" % (SC + t, SC + t))
    e.i("v_add_f32 v32, v%d, v%d" % (SC, SC + 1))
    e.i("v_add_f32 v33, v%d, v%d" % (SC + 2, SC + 3))
    for t in range(4, 16, 2):
        e.i("v_add_f32 v32, v32, v%d" % (SC + t))
        e.i("v_add_f32 v33, v33, v%d" % (SC + t + 1))
    e.i("v_add_f32 v5, v32, v33")
    for r in range(24):
        e.i("v_mov_b32 v%d, 0" % (ACC + r))
    e.i("v_mul_u32_u24 v60, 205, v1")
    e.i("v_lshrrev_b32 v60, 11, v60")
    e.i("v_mul_u32_u24 v61, 10, v60")
    e.i("v_sub_u32 v61, v1, v61")
    e.i("v_mul_u32_u24 v62, 1280, v60")
    e.i("v_lshlrev_b32 v63, 4, v61")
    e.i("v_add_u32 v62, v62, v63")
    e.i("v_mul_u32_u24 v3, 20, v1")
    e.i("s_mul_i32 s84, s%d, 192" % S_H)
    e.i("s_mul_i32 s83, s%d, 24" % S_W)
    e.i("s_add_u32 s84, s84, s83")
    e.i("s_mul_i32 s84, s84, 1280")
    e.i("s_mul_i32 s83, s%d, 160" % S_S)
    e.i("s_add_u32 s84, s84, s83")
    e.i("s_mul_i32 s85, s%d, 48" % S_H)
    e.i("s_mul_i32 s86, s%d, 6" % S_W)
    e.i("s_add_u32 s85, s85, s86")
    e.i("s_mul_i32 s85, s85, 1280")
    e.i("s_add_u32 s85, s85, s83")
    vt = list(range(32, 40))
    for t in range(16):
        e.wait_vm(("v", t, 2))
        fma_slot(e, slot(t), ACC, SC + t, vt)
        if t == 1:
            e.i("s_mov_b32 exec_hi, 0x0fffffff")
            for i in range(4):
                e.i("buffer_load_dwordx4 %s, v62, %s, s84 offen" % (R(64 + 4 * i, 4), S4(S_WO)), tag=("wo", i))
                if i < 3:
                    e.i("s_add_u32 s84, s84, %d" % (6 * 1280))
            e.i("buffer_load_dwordx4 %s, v62, %s, s85 offen" % (R(80, 4), S4(S_WD)), tag="wd")
            e.i("s_mov_b64 exec, -1")
        if t == 3:
            e.i("buffer_load_dwordx4 v[88:91], v3, %s, 0 offen" % S4(S_X), tag="gx0")
            e.i("buffer_load_dword v92, v3, %s, 0 offen offset:16" % S4(S_X), tag="gx1")
            e.i("buffer_load_dwordx4 v[96:99], v3, %s, 0 offen" % S4(S_GW), tag="gw0")
            e.i("buffer_load_dword v100, v3, %s, 0 offen offset:16" % S4(S_GW), tag="gw1")
            e.i("s_lshl_b32 s90, s%d, 2" % S_H)
            e.i("v_mov_b32 v101, s90")
            e.i("buffer_load_dword v102, v101, %s, 0 offen sc0 sc1" % S4(S_DBG), tag="cnt")
    stamp(e, 3)
    e.wait_vm("cnt")
    for k in range(5):
        e.i("v_lshlrev_b32 v44, 16, v%d" % (88 + k))
        e.i("v_and_b32 v45, s%d, v%d" % (S_MASK, 88 + k))
        e.i("v_lshlrev_b32 v46, 16, v%d" % (96 + k))
        e.i("v_and_b32 v47, s%d, v%d" % (S_MASK, 96 + k))
        e.i("v_mul_f32 v44, v44, v46")
        e.i("v_mul_f32 v45, v45, v47")
        bf16_round_pair(e, 44, 45, 46)
        if k == 0:
            e.i("v_add_f32 v48, v44, v45")
        else:
            e.i("v_add_f32 v48, v48, v44")
            e.i("v_add_f32 v48, v48, v45")
    reduce24(e, ACC)
    for k in range(6):
        e.i("ds_write_b32 v7, v%d offset:%d" % (ACC + 4 * k, (k >> 1) * 256 + (k & 1) * 16))
    dpp_full_reduce(e, [5, 48])
    e.i("s_mov_b32 s90, 0x3e000000")
    e.i("v_mul_f32 v5, s90, v5")
    e.i("s_lshl_b32 s90, s%d, 3" % S_W)
    e.i("s_add_u32 s90, s90, %d" % L_ML)
    e.i("v_mov_b32 v63, s90")
    e.i("v_mov_b32 v4, v6")
    e.i("s_mov_b32 exec_lo, 0")
    e.i("s_mov_b32 exec_hi, 0x80000000")
    e.i("ds_write_b64 v63, v[4:5]")
    e.i("s_mov_b64 exec, -1")
    bf16_round(e, 48, 44)
    e.i("s_mov_b32 s90, %s" % f32(LOG2E))
    e.i("v_mul_f32 v48, s90, v48")
    e.i("v_exp_f32 v48, -v48")
    e.i("v_add_f32 v48, 1.0, v48")
    e.i("v_rcp_f32 v48, v48")
    bf16_round(e, 48, 44)
    e.i("v_readlane_b32 s91, v48, 63")
    e.i("v_lshlrev_b32 v7, 2, v0")
    e.i("s_waitcnt lgkmcnt(0)")
    e.i("s_barrier")
    stamp(e, 4)
    e.i("s_lshl_b32 s86, s%d, 13" % S_H)
    e.i("s_cmp_ge_u32 s%d, 3" % S_W)
    e.i("s_cbranch_scc1 L_pub")
    e.i("v_mov_b32 v4, %d" % L_ML)
    for r in range(4):
        e.i("ds_read_b128 %s, v4 offset:%d" % (R(104 + 4 * r, 4), 16 * r))
    for w in range(8):
        e.i("ds_read_b32 v%d, v7 offset:%d" % (120 + w, w * 768))
    e.i("s_waitcnt lgkmcnt(0)")
    e.i("v_max3_f32 v128, v104, v106, v108")
    e.i("v_max3_f32 v129, v110, v112, v114")
    e.i("v_max3_f32 v128, v128, v116, v118")
    e.i("v_max_f32 v128, v128, v129")
    for w in range(8):
        e.i("v_sub_f32 v%d, v%d, v128" % (132 + w, 104 + 2 * w))
    for w in range(8):
        e.i("v_mul_f32 v%d, s90, v%d" % (132 + w, 132 + w))
    for w in range(8):
        e.i("v_exp_f32 v%d, v%d" % (132 + w, 132 + w))
    e.i("v_mul_f32 v130, v132, v120")
    e.i("v_mul_f32 v129, v132, v105")
    for w in range(1, 8):
        e.i("v_fmac_f32 v130, v%d, v%d" % (132 + w, 120 + w))
        e.i("v_fmac_f32 v129, v%d, v%d" % (132 + w, 105 + 2 * w))
    e.i("s_lshl_b32 s83, s%d, 10" % S_S)
    e.i("s_add_u32 s83, s83, s86")
    e.i("buffer_store_dword v130, v7, %s, s83 offen sc0 sc1" % S4(S_WS))
    e.i("s_cmp_lg_u32 s%d, 0" % S_W)
    e.i("s_cbranch_scc1 L_pub")
    e.i("s_mov_b64 exec, 1")
    e.i("buffer_store_dwordx2 v[128:129], v7, %s, s83 offen offset:768 sc0 sc1" % S4(S_WS))
    e.i("s_mov_b64 exec, -1")
    e.label("L_pub")
    e.i("s_nop 3")
    e.wait_vm_all()
    e.i("s_barrier")
    e.i("s_cmp_lg_u32 s%d, 0" % S_W)
    e.i("s_cbranch_scc1 L_polled")
    e.i("v_mov_b32 v104, 1")
    e.i("v_mov_b32 v105, 0")
    e.i("s_mov_b64 exec, 1")
    e.i("buffer_store_dword v104, v105, %s, s3 offen sc0 sc1" % S4(S_WS))
    e.i("s_mov_b64 exec, -1")
    stamp(e, 5)
    e.i("s_mov_b32 s83, 0")
    e.label("L_poll1")
    e.i("s_nop 3")
    e.i("v_readfirstlane_b32 s90, v102")
    e.i("s_cmp_ge_u32 s90, 8")
    e.i("s_cbranch_scc1 L_poll2")
    e.i("s_add_u32 s83, s83, 1")
    e.i("s_cmp_ge_u32 s83, 0x400000")
    e.i("s_cbranch_scc1 L_poll2")
    e.i("s_sleep 2")
    e.i("buffer_load_dword v102, v101, %s, 0 offen sc0 sc1" % S4(S_DBG))
    e.i("s_waitcnt vmcnt(0)")
    e.i("s_branch L_poll1")
    e.label("L_poll2")
    e.i("s_nop 3")
    e.i("s_andn2_b32 s90, s3, 0xff")
    e.i("v_and_b32 v105, 7, v1")
    e.i("v_lshlrev_b32 v105, 2, v105")
    e.label("L_poll3")
    e.i("s_nop 3")
    e.i("buffer_load_dword v104, v105, %s, s90 offen sc0 sc1" % S4(S_WS))
    e.i("s_waitcnt vmcnt(0)")
    e.i("v_cmp_ne_u32 vcc, 1, v104")
    e.i("s_cmp_eq_u64 vcc, 0")
    e.i("s_cbranch_scc1 L_polled")
    e.i("s_add_u32 s83, s83, 1")
    e.i("s_cmp_ge_u32 s83, 0x400000")
    e.i("s_cbranch_scc1 L_polled")
    e.i("s_sleep 1")
    e.i("s_branch L_poll3")
    e.label("L_polled")
    e.i("s_nop 3")
    e.i("s_barrier")
    stamp(e, 6)
    e.i("v_mov_b32 v8, 768")
    for s in range(8):
        e.i("s_add_u32 s87, s86, %d" % (s * 1024))
        e.i("buffer_load_dwordx2 %s, v8, %s, s87 offen sc0 sc1" % (R(104 + 2 * s, 2), S4(S_WS)), tag=("ml", s))
        e.i("buffer_load_dword v%d, v7, %s, s87 offen sc0 sc1" % (120 + s, S4(S_WS)), tag=("o", s))
    e.i("v_subrev_u32 v9, 192, v0")
    e.i("v_mul_u32_u24 v10, 43, v9")
    e.i("v_lshrrev_b32 v10, 8, v10")
    e.i("v_mul_u32_u24 v11, 6, v10")
    e.i("v_sub_u32 v11, v9, v11")
    e.i("v_lshlrev_b32 v10, 10, v10")
    e.i("v_lshlrev_b32 v11, 2, v11")
    e.i("v_add_u32 v10, v10, v11")
    e.i("v_add_u32 v10, %d, v10" % (194 * 4))
    e.i("buffer_load_dword v128, v10, %s, s86 offen sc0 sc1" % S4(S_WS), tag="h")
    e.wait_vm("h")
    e.i("v_max3_f32 v30, v104, v106, v108")
    e.i("v_max3_f32 v31, v110, v112, v114")
    e.i("v_max3_f32 v30, v30, v116, v118")
    e.i("v_max_f32 v30, v30, v31")
    e.i("s_mov_b32 s90, %s" % f32(LOG2E))
    for s in range(8):
        e.i("v_sub_f32 v%d, v%d, v30" % (32 + s, 104 + 2 * s))
    for s in range(8):
        e.i("v_mul_f32 v%d, s90, v%d" % (32 + s, 32 + s))
    for s in range(8):
        e.i("v_exp_f32 v%d, v%d" % (32 + s, 32 + s))
    e.i("v_mul_f32 v40, v32, v120")
    e.i("v_mul_f32 v41, v32, v105")
    for s in range(1, 8):
        e.i("v_fmac_f32 v40, v%d, v%d" % (32 + s, 120 + s))
        e.i("v_fmac_f32 v41, v%d, v%d" % (32 + s, 105 + 2 * s))
    e.i("v_rcp_f32 v42, v41")
    e.i("v_mul_f32 v43, v40, v42")
    e.i("v_fma_f32 v44, -v43, v41, v40")
    e.i("v_fmac_f32 v43, v44, v42")
    bf16_round(e, 43, 44)
    e.i("v_cmp_gt_u32 vcc, 192, v0")
    e.i("v_cndmask_b32 v43, v128, v43, vcc")
    e.i("v_cmp_gt_u32 vcc, 240, v0")
    e.i("s_and_saveexec_b64 s[30:31], vcc")
    e.i("ds_write_b32 v7, v43 offset:%d" % T_O)
    e.i("s_mov_b64 exec, -1")
    e.i("s_waitcnt lgkmcnt(0)")
    e.i("s_barrier")
    stamp(e, 7)
    e.i("s_mul_i32 s90, s%d, 96" % S_W)
    e.i("v_lshlrev_b32 v8, 2, v60")
    e.i("v_add_u32 v9, s90, v8")
    for i in range(4):
        e.i("ds_read_b32 v%d, v9 offset:%d" % (50 + i, T_O + 24 * i))
    e.i("s_mul_i32 s90, s%d, 24" % S_W)
    e.i("v_add_u32 v9, s90, v8")
    e.i("ds_read_b32 v54, v9 offset:%d" % (T_O + 768))
    e.i("s_waitcnt lgkmcnt(0)")
    A, B = 120, 128
    for i in range(4):
        for k in range(4):
            e.i("v_lshlrev_b32 v44, 16, v%d" % (64 + 4 * i + k))
            e.i("v_and_b32 v45, s%d, v%d" % (S_MASK, 64 + 4 * i + k))
            op = "v_mul_f32" if i == 0 else "v_fmac_f32"
            e.i("%s v%d, v%d, v44" % (op, A + 2 * k, 50 + i))
            e.i("%s v%d, v%d, v45" % (op, A + 2 * k + 1, 50 + i))
    for k in range(4):
        e.i("v_lshlrev_b32 v44, 16, v%d" % (80 + k))
        e.i("v_and_b32 v45, s%d, v%d" % (S_MASK, 80 + k))
        e.i("v_mul_f32 v%d, v54, v44" % (B + 2 * k))
        e.i("v_mul_f32 v%d, v54, v45" % (B + 2 * k + 1))
    e.i("s_mul_i32 s90, s%d, %d" % (S_W, 6 * 320))
    e.i("v_mul_u32_u24 v8, 320, v60")
    e.i("v_lshlrev_b32 v9, 5, v61")
    e.i("v_add3_u32 v8, v8, v9, s90")
    e.i("s_mov_b32 exec_hi, 0x0fffffff")
    e.i("ds_write_b128 v8, %s offset:%d" % (R(A, 4), T_PA))
    e.i("ds_write_b128 v8, %s offset:%d" % (R(A + 4, 4), T_PA + 16))
    e.i("ds_write_b128 v8, %s offset:%d" % (R(B, 4), T_PB))
    e.i("ds_write_b128 v8, %s offset:%d" % (R(B + 4, 4), T_PB + 16))
    e.i("s_mov_b64 exec, -1")
    e.i("s_waitcnt lgkmcnt(0)")
    e.i("s_barrier")
    stamp(e, 8)
    e.i("s_cmp_ge_u32 s%d, 3" % S_W)
    e.i("s_cbranch_scc1 L_tail_sync")
    e.i("v_cmp_le_u32 vcc, 80, v0")
    e.i("v_mov_b32 v8, 0")
    e.i("v_mov_b32 v9, %d" % (15360 - 320))
    e.i("v_cndmask_b32 v8, v8, v9, vcc")
    e.i("v_add_u32 v8, v8, v7")
    for sl in range(48):
        e.i("ds_read_b32 v%d, v8 offset:%d" % (140 + sl, T_PA + sl * 320))
    e.i("s_waitcnt lgkmcnt(0)")
    for st in (24, 12, 6, 3):
        for k in range(st):
            e.i("v_add_f32 v%d, v%d, v%d" % (140 + k, 140 + k, 140 + k + st))
    e.i("v_add_f32 v140, v140, v141")
    e.i("v_add_f32 v140, v140, v142")
    e.i("s_lshl_b32 s90, s%d, 5" % S_S)
    e.i("s_add_u32 s90, s90, s%d" % S_H)
    e.i("s_mul_i32 s90, s90, 640")
    e.i("s_add_u32 s90, s90, %d" % PART_OFF)
    e.i("v_cmp_gt_u32 vcc, 160, v0")
    e.i("s_and_saveexec_b64 s[30:31], vcc")
    e.i("buffer_store_dword v140, v7, %s, s90 offen sc0 sc1" % S4(S_WS))
    e.i("s_mov_b64 exec, -1")
    e.label("L_tail_sync")
    e.i("s_nop 3")
    e.i("s_waitcnt vmcnt(0)")
    e.i("s_barrier")
    e.i("s_cmp_lg_u32 s%d, 0" % S_W)
    e.i("s_cbranch_scc1 L_tail_w")
    e.i("s_mov_b64 exec, 1")
    e.i("v_mov_b32 v8, 1")
    e.i("s_lshl_b32 s90, s%d, 2" % S_S)
    e.i("s_add_u32 s90, s90, 128")
    e.i("v_mov_b32 v9, s90")
    e.i("buffer_atomic_add v8, v9, %s, 0 offen sc0 sc1" % S4(S_DBG))
    e.i("s_waitcnt vmcnt(0)")
    e.i("v_mov_b32 v9, %d" % T_FLAG)
    e.i("ds_write_b32 v9, v8")
    e.i("s_mov_b64 exec, -1")
    e.label("L_tail_w")
    e.i("s_nop 3")
    e.i("s_waitcnt lgkmcnt(0)")
    e.i("s_barrier")
    e.i("v_mov_b32 v9, %d" % T_FLAG)
    e.i("ds_read_b32 v8, v9")
    e.i("s_waitcnt lgkmcnt(0)")
    stamp(e, 9)
    stamp_store(e, 10, 0)
    e.i("v_readfirstlane_b32 s90, v8")
    e.i("s_cmp_lg_u32 s90, 31")
    e.i("s_cbranch_scc1 L_exit")
    e.i("s_cmp_ge_u32 s%d, 3" % S_W)
    e.i("s_cbranch_scc1 L_tail_fin2")
    e.i("s_mul_i32 s90, s%d, %d" % (S_S, 32 * 640))
    e.i("s_add_u32 s90, s90, %d" % PART_OFF)
    for hh in range(32):
        e.i("buffer_load_dword v%d, v7, %s, s90 offen sc0 sc1" % (140 + hh, S4(S_WS)))
        if hh < 31:
            e.i("s_add_u32 s90, s90, 640")
    e.i("s_waitcnt vmcnt(0)")
    for st in (16, 8, 4, 2, 1):
        for k in range(st):
            e.i("v_add_f32 v%d, v%d, v%d" % (140 + k, 140 + k, 140 + k + st))
    bf16_round(e, 140, 141)
    e.i("ds_write_b32 v7, v140 offset:%d" % T_FIN)
    e.label("L_tail_fin2")
    e.i("s_nop 3")
    e.i("s_waitcnt lgkmcnt(0)")
    e.i("s_barrier")
    e.i("s_cmp_ge_u32 s%d, 2" % S_W)
    e.i("s_cbranch_scc1 L_exit")
    e.i("ds_read_b32 v8, v7 offset:%d" % T_FIN)
    e.i("ds_read_b32 v9, v7 offset:%d" % (T_FIN + 320))
    e.i("s_waitcnt lgkmcnt(0)")
    e.i("v_mul_f32 v8, s91, v8")
    e.i("v_mov_b32 v10, s91")
    e.i("v_sub_f32 v10, 1.0, v10")
    bf16_round(e, 10, 11)
    e.i("v_mul_f32 v9, v10, v9")
    bf16_round_pair(e, 8, 9, 11)
    e.i("v_add_f32 v8, v8, v9")
    e.i("v_cvt_pk_bf16_f32 v8, v8, v8")
    e.i("s_mul_i32 s90, s%d, 160" % S_S)
    e.i("v_lshlrev_b32 v9, 1, v0")
    e.i("v_cmp_gt_u32 vcc, 80, v0")
    e.i("s_and_saveexec_b64 s[30:31], vcc")
    e.i("buffer_store_short v8, v9, %s, s90 offen" % S4(S_OUT))
    e.i("s_mov_b64 exec, -1")
    stamp(e, 10)
    stamp_store(e, 11, 0)
    e.label("L_exit")
    e.i("s_endpgm")


def descriptor(name, vgpr, sgpr=102):
    acc = (vgpr + 3) // 4 * 4
    return """.p2align 6
.amdhsa_kernel %s
  .amdhsa_next_free_vgpr %d
  .amdhsa_next_free_sgpr %d
  .amdhsa_accum_offset %d
  .amdhsa_group_segment_fixed_size 0
  .amdhsa_kernarg_size 104
  .amdhsa_user_sgpr_count 2
  .amdhsa_user_sgpr_kernarg_segment_ptr 1
  .amdhsa_system_sgpr_workgroup_id_x 1
.end_amdhsa_kernel
""" % (name, vgpr, sgpr, acc)


KPRE = 5
KLATE = False


def main():
    global STAMPS, KPRE, KLATE, NT
    outf = OUT
    for a in sys.argv[1:]:
        if a == "stamps":
            STAMPS = True
        elif a.startswith("out="):
            outf = a[4:]
        elif a.startswith("kpre="):
            KPRE = int(a[5:])
        elif a == "klate":
            KLATE = True
        elif a == "nont":
            NT = ""
    ref = open(OUT + ".ref").read().splitlines()
    head = []
    for ln in ref:
        if ln.startswith(";") and "@launch" not in ln:
            head.append(ln)
        elif ln.startswith(";"):
            continue
        else:
            break
    e1 = Emit()
    fused_kernel(e1)
    txt = "\n".join(head) + "\n"
    txt += "; @launch grid=(256,1,1) block=(512,1,1) lds=%d\n" % (FUSED_LDS + 192)
    txt += '.amdgcn_target "amdgcn-amd-amdhsa--gfx950"\n.text\n'
    txt += e1.text()
    txt += '.section .rodata,"a"\n'
    txt += descriptor(KNAME, 256)
    open(outf, "w").write(txt)


if __name__ == "__main__":
    main()
```

```python
import struct
import sys

sys.path.insert(0, "gen")
from emit import Emit

OUT = "gated_mix__gqa_block_cached__glu_gated_bilinear__decode.s"


def f32(x):
    return "0x%08x" % struct.unpack("<I", struct.pack("<f", x))[0]


LOG2E = 1.4426950408889634
SCALE = 192 ** -0.5

KV_BYTES = 100663296
WQ_BYTES = 640 * 6144 * 2
WO_BYTES = 6144 * 640 * 2
WG_BYTES = 640 * 1536 * 2
WD_BYTES = 1536 * 640 * 2
WS_BYTES = 402653184
PART_OFF = 0x100000

S_K, S_V, S_WQ, S_X, S_WG, S_WU, S_WS, S_WO, S_WD, S_GW, S_OUT, S_DBG = (
    32, 36, 40, 44, 48, 52, 56, 60, 64, 68, 72, 76)
S_H, S_S, S_W = 80, 81, 82
S_MASK = 89

NT = " nt"
STAMPS = False
STAMP_OFF = 0x800000


STAMP_REGS = [92, 94, 96, 98, 100, 4, 6, 8, 10, 12, 14, 16, 18, 20, 22, 24, 26]


def stamp(e, n):
    if STAMPS:
        e.i("s_memrealtime s[%d:%d]" % (STAMP_REGS[n], STAMP_REGS[n] + 1))


def stamp_store(e, nst, kidx, va=250, vb=251):
    if not STAMPS:
        return
    e.i("s_waitcnt lgkmcnt(0)")
    e.i("s_lshl_b32 s90, s2, 3")
    e.i("s_add_u32 s90, s90, s%d" % S_W)
    e.i("s_lshl_b32 s90, s90, 6")
    e.i("s_add_u32 s90, s90, %d" % (STAMP_OFF + kidx * 0x100000))
    e.i("s_mov_b64 exec, 1")
    e.i("v_mov_b32 v%d, 0" % va)
    for n in range(nst):
        e.i("v_mov_b32 v%d, s%d" % (vb, STAMP_REGS[n]))
        e.i("buffer_store_dword v%d, v%d, %s, s90 offen offset:%d" % (vb, va, S4(S_WS), 4 * n))
    e.i("s_mov_b64 exec, -1")


def srd(e, base, ptr, nbytes):
    e.i("s_mov_b32 s%d, s%d" % (base, ptr))
    e.i("s_and_b32 s%d, s%d, 0xffff" % (base + 1, ptr + 1))
    e.i("s_mov_b32 s%d, %d" % (base + 2, nbytes))
    e.i("s_mov_b32 s%d, 0x00020000" % (base + 3))


def R(a, n):
    return "v[%d:%d]" % (a, a + n - 1)


def S4(a):
    return "s[%d:%d]" % (a, a + 3)


def common_prologue(e, exit_label):
    e.i("s_cmp_ge_u32 s2, 256")
    e.i("s_cbranch_scc1 %s" % exit_label)
    e.i("s_load_dwordx16 s[4:19], s[0:1], 0")
    e.i("s_load_dwordx8 s[20:27], s[0:1], 64")
    e.i("s_load_dwordx2 s[28:29], s[0:1], 96")
    e.i("v_and_b32 v1, 63, v0")
    e.i("v_lshrrev_b32 v4, 6, v0")
    e.i("v_readfirstlane_b32 s%d, v4" % S_W)
    e.i("s_and_b32 s%d, s2, 7" % S_H)
    e.i("s_lshl_b32 s%d, s%d, 2" % (S_H, S_H))
    e.i("s_lshr_b32 s%d, s2, 3" % S_S)
    e.i("s_and_b32 s83, s%d, 3" % S_S)
    e.i("s_add_u32 s%d, s%d, s83" % (S_H, S_H))
    e.i("s_lshr_b32 s%d, s2, 5" % S_S)
    e.i("s_mov_b32 s%d, 0xffff0000" % S_MASK)


def dpp_full_reduce(e, regs):
    for mod in ("row_shr:1 row_mask:0xf bank_mask:0xf bound_ctrl:0",
                "row_shr:2 row_mask:0xf bank_mask:0xf bound_ctrl:0",
                "row_shr:4 row_mask:0xf bank_mask:0xf bound_ctrl:0",
                "row_shr:8 row_mask:0xf bank_mask:0xf bound_ctrl:0",
                "row_bcast:15 row_mask:0xa bank_mask:0xf",
                "row_bcast:31 row_mask:0xc bank_mask:0xf"):
        for r in regs:
            e.i("v_add_f32_dpp v%d, v%d, v%d %s" % (r, r, r, mod))


def reduce24(e, acc):
    for i in range(12):
        e.i("v_permlane32_swap_b32 v%d, v%d" % (acc + 2 * i, acc + 2 * i + 1))
    for i in range(12):
        e.i("v_add_f32 v%d, v%d, v%d" % (acc + 2 * i, acc + 2 * i, acc + 2 * i + 1))
    for k in range(6):
        e.i("v_permlane16_swap_b32 v%d, v%d" % (acc + 4 * k, acc + 4 * k + 2))
    for k in range(6):
        e.i("v_add_f32 v%d, v%d, v%d" % (acc + 4 * k, acc + 4 * k, acc + 4 * k + 2))
    for k in range(6):
        e.i("v_add_f32_dpp v%d, v%d, v%d row_ror:8 row_mask:0xf bank_mask:0xf" % (acc + 4 * k, acc + 4 * k, acc + 4 * k))


def fma_slot(e, base, acc, coef, temps):
    nt = len(temps)
    for k in range(12):
        t0 = temps[(2 * k) % nt]
        t1 = temps[(2 * k + 1) % nt]
        e.i("v_lshlrev_b32 v%d, 16, v%d" % (t0, base + k))
        e.i("v_and_b32 v%d, s%d, v%d" % (t1, S_MASK, base + k))
        e.i("v_fmac_f32 v%d, v%d, v%d" % (acc + 2 * k, coef, t0))
        e.i("v_fmac_f32 v%d, v%d, v%d" % (acc + 2 * k + 1, coef, t1))


def bf16_round_pair(e, a, b, t):
    e.i("v_cvt_pk_bf16_f32 v%d, v%d, v%d" % (t, a, b))
    e.i("v_lshlrev_b32 v%d, 16, v%d" % (a, t))
    e.i("v_and_b32 v%d, s%d, v%d" % (b, S_MASK, t))


def bf16_round(e, a, t):
    e.i("v_cvt_pk_bf16_f32 v%d, v%d, v%d" % (t, a, a))
    e.i("v_lshlrev_b32 v%d, 16, v%d" % (a, t))


L_RED = 0
L_FFN = 6144
L_QB = 9216
L_ML = 9600
MAIN_LDS = 10240

ACC = 8
QR = 32
SC = 44
SLOT0 = 64


def slot(t):
    return SLOT0 + 12 * t


def kv_loads(e, srdbase, t, tagp):
    e.i("s_add_u32 s88, s87, %d" % (t * 3072))
    for j in range(3):
        e.i("buffer_load_dwordx4 %s, v2, %s, s88 offen offset:%d%s" % (R(slot(t) + 4 * j, 4), S4(srdbase), j * 128, NT),
            tag=(tagp, t, j))


FLAG_OFF = 0x200000
REC2_OFF = 0x80000
KNAME = "gated_mix__gqa_block_cached__glu_gated_bilinear__decode_kernel"

T_O = 10240
T_PA = T_O + 1024
T_PB = T_PA + 15360
T_FIN = T_PB + 15360
T_FLAG = T_FIN + 1024
FUSED_LDS = T_FLAG + 64


def fused_kernel(e):
    name = KNAME
    e.raw(".globl %s" % name)
    e.raw(".p2align 8")
    e.raw(".type %s,@function" % name)
    e.raw("%s:" % name)
    common_prologue(e, "L_exit")
    e.i("v_lshrrev_b32 v4, 3, v1")
    e.i("v_and_b32 v5, 7, v1")
    e.i("v_lshlrev_b32 v5, 4, v5")
    e.i("v_mul_u32_u24 v2, 0x180, v4")
    e.i("v_add_u32 v2, v2, v5")
    e.i("v_mul_u32_u24 v3, %d, v4" % (10 * 12288))
    e.i("v_add_u32 v3, v3, v5")
    e.i("v_mul_u32_u24 v6, 20, v4")
    e.i("v_mul_u32_u24 v7, 3072, v4")
    e.i("v_add_u32 v7, v7, v5")
    e.i("v_lshlrev_b32 v55, 1, v4")
    for r in list(range(32, 48)) + [54, 60]:
        e.i("v_mov_b32 v%d, 0" % r)
    for r in range(24):
        e.i("v_mov_b32 v%d, 0" % (ACC + r))
    e.i("s_mul_i32 s84, s%d, 160" % S_W)
    e.i("s_mul_i32 s85, s%d, %d" % (S_W, 80 * 12288))
    e.i("s_mul_i32 s83, s%d, 384" % S_H)
    e.i("s_add_u32 s85, s85, s83")
    e.i("s_mul_i32 s86, s%d, 80" % S_S)
    e.i("s_mul_i32 s83, s%d, 10" % S_W)
    e.i("s_add_u32 s86, s86, s83")
    e.i("s_lshl_b32 s88, s86, 1")
    e.i("s_mul_i32 s86, s86, 3072")
    e.i("s_mul_i32 s83, s%d, 96" % S_H)
    e.i("s_add_u32 s86, s86, s83")
    e.i("s_add_u32 s90, s86, %d" % (8 * 3072))
    e.i("s_mul_i32 s87, s%d, %d" % (S_H, 8192 * 384))
    e.i("s_mul_i32 s83, s%d, %d" % (S_S, 1024 * 384))
    e.i("s_add_u32 s87, s87, s83")
    e.i("s_mul_i32 s83, s%d, %d" % (S_W, 128 * 384))
    e.i("s_add_u32 s87, s87, s83")
    e.i("s_waitcnt lgkmcnt(0)")
    stamp(e, 0)
    srd(e, S_X, 4, 1280)
    srd(e, S_WG, 16, WG_BYTES)
    srd(e, S_WU, 18, WG_BYTES)
    srd(e, S_WQ, 10, WQ_BYTES)
    srd(e, S_K, 6, KV_BYTES)
    srd(e, S_V, 8, KV_BYTES)
    srd(e, S_WS, 28, WS_BYTES)
    srd(e, S_GW, 22, 1280)
    srd(e, S_WO, 12, WO_BYTES)
    srd(e, S_WD, 20, WD_BYTES)
    srd(e, S_OUT, 24, 1280)
    srd(e, S_DBG, 26, 256)
    e.i("s_lshl_b32 s91, s%d, 8" % S_H)
    e.i("s_lshl_b32 s83, s%d, 2" % S_S)
    e.i("s_add_u32 s91, s91, s83")
    e.i("s_add_u32 s91, s91, %d" % FLAG_OFF)
    e.i("s_mov_b32 s3, s91")
    e.i("s_mov_b64 exec, 1")
    e.i("buffer_store_dword v60, v60, %s, s3 offen sc0 sc1" % S4(S_WS), tag="clr")
    e.i("s_mov_b64 exec, -1")
    e.i("buffer_load_dwordx4 v[48:51], v6, %s, s84 offen" % S4(S_X), tag="x0")
    e.i("buffer_load_dword v52, v6, %s, s84 offen offset:16" % S4(S_X), tag="x1")
    e.i("buffer_load_ushort v53, v55, %s, s88 offen" % S4(S_X), tag="xa")
    e.i("s_mov_b32 exec_lo, 0x3f3f3f3f")
    e.i("s_mov_b32 exec_hi, 0x3f3f3f3f")
    e.i("buffer_load_dwordx4 v[32:35], v7, %s, s86 offen" % S4(S_WG), tag="ga")
    e.i("buffer_load_dwordx4 v[40:43], v7, %s, s86 offen" % S4(S_WU), tag="ua")
    e.i("s_mov_b64 exec, 0x3f3f")
    e.i("buffer_load_ushort v54, v55, %s, s88 offen offset:16" % S4(S_X), tag="xb")
    e.i("buffer_load_dwordx4 v[36:39], v7, %s, s90 offen" % S4(S_WG), tag="gb")
    e.i("buffer_load_dwordx4 v[44:47], v7, %s, s90 offen" % S4(S_WU), tag="ub")
    e.i("s_mov_b64 exec, -1")
    for i in range(10):
        if i:
            e.i("s_add_u32 s85, s85, 12288")
        for j in range(3):
            e.i("buffer_load_dwordx4 %s, v3, %s, s85 offen offset:%d" % (R(slot(6 + i) + 4 * j, 4), S4(S_WQ), j * 128),
                tag=("wq", i, j))
    if QBAR:
        e.i("s_barrier")
    for t in range(KPRE):
        kv_loads(e, S_K, t, "k")
    FA = [slot(5) + r for r in range(12)] + [56, 57, 58, 59]
    e.wait_vm("ub")
    stamp(e, 11)
    e.i("v_lshlrev_b32 v53, 16, v53")
    e.i("v_lshlrev_b32 v54, 16, v54")
    for m, (ra, rb) in enumerate(((32, 36), (40, 44))):
        for k in range(4):
            e.i("v_lshlrev_b32 v60, 16, v%d" % (ra + k))
            e.i("v_and_b32 v61, s%d, v%d" % (S_MASK, ra + k))
            e.i("v_lshlrev_b32 v62, 16, v%d" % (rb + k))
            e.i("v_and_b32 v63, s%d, v%d" % (S_MASK, rb + k))
            e.i("v_mul_f32 v%d, v53, v60" % FA[m * 8 + 2 * k])
            e.i("v_mul_f32 v%d, v53, v61" % FA[m * 8 + 2 * k + 1])
            e.i("v_fmac_f32 v%d, v54, v62" % FA[m * 8 + 2 * k])
            e.i("v_fmac_f32 v%d, v54, v63" % FA[m * 8 + 2 * k + 1])
    for i in range(8):
        e.i("v_permlane32_swap_b32 v%d, v%d" % (FA[2 * i], FA[2 * i + 1]))
    for i in range(8):
        e.i("v_add_f32 v%d, v%d, v%d" % (FA[2 * i], FA[2 * i], FA[2 * i + 1]))
    for k in range(4):
        e.i("v_permlane16_swap_b32 v%d, v%d" % (FA[4 * k], FA[4 * k + 2]))
    for k in range(4):
        e.i("v_add_f32 v%d, v%d, v%d" % (FA[4 * k], FA[4 * k], FA[4 * k + 2]))
    for k in range(4):
        e.i("v_add_f32_dpp v%d, v%d, v%d row_ror:8 row_mask:0xf bank_mask:0xf" % (FA[4 * k], FA[4 * k], FA[4 * k]))
    e.i("v_and_b32 v4, 7, v1")
    e.i("v_lshlrev_b32 v4, 5, v4")
    e.i("v_bfe_u32 v5, v1, 4, 1")
    e.i("v_lshlrev_b32 v5, 3, v5")
    e.i("v_add_u32 v4, v4, v5")
    e.i("v_bfe_u32 v5, v1, 5, 1")
    e.i("v_lshlrev_b32 v5, 2, v5")
    e.i("v_add_u32 v7, v4, v5")
    e.i("s_mul_i32 s90, s%d, 384" % S_W)
    e.i("v_add_u32 v60, s90, v7")
    e.i("s_mov_b32 exec_lo, 0x3f3f3f3f")
    e.i("s_mov_b32 exec_hi, 0x3f3f3f3f")
    for k in range(4):
        e.i("ds_write_b32 v60, v%d offset:%d" % (FA[4 * k], L_FFN + (k >> 1) * 192 + (k & 1) * 16))
    e.i("s_mov_b64 exec, -1")
    e.i("s_waitcnt lgkmcnt(0)")
    temps = list(range(56, 64))
    late = list(range(KPRE, 6))
    for i in range(10):
        e.wait_vm(("wq", i, 2))
        if i in (0, 4, 9):
            stamp(e, 12 + (0, 4, 9).index(i))
        if i % 2 == 0:
            e.i("v_lshlrev_b32 v55, 16, v%d" % (48 + i // 2))
        else:
            e.i("v_and_b32 v55, s%d, v%d" % (S_MASK, 48 + i // 2))
        fma_slot(e, slot(6 + i), ACC, 55, temps)
        if not KLATE:
            if i == 0:
                for t in late:
                    kv_loads(e, S_K, t, "k")
            kv_loads(e, S_K, 6 + i, "k")
    if KLATE:
        for t in late + list(range(6, 16)):
            kv_loads(e, S_K, t, "k")
    reduce24(e, ACC)
    e.i("s_mul_i32 s90, s%d, 768" % S_W)
    e.i("v_add_u32 v7, s90, v7")
    for k in range(6):
        e.i("ds_write_b32 v7, v%d offset:%d" % (ACC + 4 * k, (k >> 1) * 256 + (k & 1) * 16))
    e.i("s_waitcnt lgkmcnt(0)")
    e.i("s_barrier")
    e.i("s_cmp_ge_u32 s%d, 3" % S_W)
    e.i("s_cbranch_scc1 L_q_notsum")
    e.i("v_lshlrev_b32 v4, 2, v0")
    for w in range(8):
        e.i("ds_read_b32 v%d, v4 offset:%d" % (56 + w, w * 768))
    e.i("s_waitcnt lgkmcnt(0)")
    for a, b in ((56, 57), (58, 59), (60, 61), (62, 63), (56, 58), (60, 62), (56, 60)):
        e.i("v_add_f32 v%d, v%d, v%d" % (a, a, b))
    e.i("v_cvt_pk_bf16_f32 v56, v56, v56")
    e.i("v_lshlrev_b32 v4, 1, v0")
    e.i("ds_write_b16 v4, v56 offset:%d" % L_QB)
    e.i("s_branch L_q_join")
    e.label("L_q_notsum")
    e.i("s_nop 3")
    e.i("s_cmp_eq_u32 s%d, 3" % S_W)
    e.i("s_cbranch_scc1 L_q_ffn")
    e.i("s_cmp_lg_u32 s%d, 4" % S_W)
    e.i("s_cbranch_scc1 L_q_join")
    e.i("s_mov_b64 exec, 1")
    e.i("v_mov_b32 v56, 1")
    e.i("s_lshl_b32 s90, s%d, 2" % S_H)
    e.i("v_mov_b32 v57, s90")
    e.i("buffer_atomic_add v56, v57, %s, 0 offen sc1" % S4(S_DBG))
    e.vm_issued -= 1
    e.i("s_mov_b64 exec, -1")
    e.i("s_branch L_q_join")
    e.label("L_q_ffn")
    e.i("s_nop 3")
    e.i("v_lshlrev_b32 v4, 2, v1")
    for w in range(8):
        e.i("ds_read_b32 v%d, v4 offset:%d" % (32 + w, L_FFN + w * 384))
        e.i("ds_read_b32 v%d, v4 offset:%d" % (40 + w, L_FFN + w * 384 + 192))
    e.i("s_waitcnt lgkmcnt(0)")
    for o in (32, 40):
        for a, b in ((0, 1), (2, 3), (4, 5), (6, 7), (0, 2), (4, 6), (0, 4)):
            e.i("v_add_f32 v%d, v%d, v%d" % (o + a, o + a, o + b))
    e.i("s_lshl_b32 s90, s%d, 3" % S_H)
    e.i("s_add_u32 s90, s90, s%d" % S_S)
    e.i("s_lshl_b32 s90, s90, 9")
    e.i("s_add_u32 s90, s90, %d" % REC2_OFF)
    e.i("s_mov_b32 exec_hi, 0xffff")
    e.i("buffer_store_dword v32, v4, %s, s90 offen sc0 sc1" % S4(S_WS))
    e.i("buffer_store_dword v40, v4, %s, s90 offen offset:192 sc0 sc1" % S4(S_WS))
    e.i("s_mov_b64 exec, -1")
    e.vm_issued -= 2
    e.label("L_q_join")
    e.i("s_nop 3")
    e.i("s_waitcnt lgkmcnt(0)")
    e.i("s_barrier")
    e.i("v_and_b32 v4, 7, v1")
    e.i("v_lshlrev_b32 v4, 4, v4")
    for j in range(3):
        e.i("ds_read_b128 %s, v4 offset:%d" % (R(QR + 4 * j, 4), L_QB + j * 128))
    e.i("s_waitcnt lgkmcnt(0)")
    stamp(e, 1)
    chains = ((4, 5, 6), (60, 61, 62))
    for t in range(16):
        c = chains[t & 1]
        for j in range(3):
            e.i("v_mov_b32 v%d, 0" % c[j])
        for j in range(3):
            e.wait_vm(("k", t, j))
            for r in range(4):
                e.i("v_dot2c_f32_bf16 v%d, v%d, v%d" % (c[j], slot(t) + 4 * j + r, QR + 4 * j + r))
        kv_loads(e, S_V, t, "v")
        if t:
            p = chains[(t - 1) & 1]
            e.i("v_add_f32 v%d, v%d, v%d" % (SC + t - 1, p[0], p[1]))
            e.i("v_add_f32 v%d, v%d, v%d" % (SC + t - 1, SC + t - 1, p[2]))
    stamp(e, 2)
    p = chains[1]
    e.i("v_add_f32 v%d, v%d, v%d" % (SC + 15, p[0], p[1]))
    e.i("v_add_f32 v%d, v%d, v%d" % (SC + 15, SC + 15, p[2]))
    for mod in ("quad_perm:[1,0,3,2]", "quad_perm:[2,3,0,1]", "row_half_mirror"):
        for t in range(16):
            e.i("v_add_f32_dpp v%d, v%d, v%d %s row_mask:0xf bank_mask:0xf" % (SC + t, SC + t, SC + t, mod))
    e.i("s_mov_b32 s90, %s" % f32(SCALE))
    for t in range(0, 16, 2):
        bf16_round_pair(e, SC + t, SC + t + 1, 32 + (t >> 1))
    for t in range(16):
        e.i("v_mul_f32 v%d, s90, v%d" % (SC + t, SC + t))
    for t in range(0, 16, 2):
        bf16_round_pair(e, SC + t, SC + t + 1, 32 + (t >> 1))
    e.i("v_max3_f32 v32, v%d, v%d, v%d" % (SC, SC + 1, SC + 2))
    e.i("v_max3_f32 v33, v%d, v%d, v%d" % (SC + 3, SC + 4, SC + 5))
    e.i("v_max3_f32 v34, v%d, v%d, v%d" % (SC + 6, SC + 7, SC + 8))
    e.i("v_max3_f32 v35, v%d, v%d, v%d" % (SC + 9, SC + 10, SC + 11))
    e.i("v_max3_f32 v36, v%d, v%d, v%d" % (SC + 12, SC + 13, SC + 14))
    e.i("v_max3_f32 v32, v32, v33, v%d" % (SC + 15))
    e.i("v_max3_f32 v34, v34, v35, v36")
    e.i("v_max_f32 v32, v32, v34")
    e.i("v_max_f32_dpp v32, v32, v32 row_ror:8 row_mask:0xf bank_mask:0xf")
    e.i("v_mov_b32 v33, v32")
    e.i("v_permlane16_swap_b32 v32, v33")
    e.i("v_max_f32 v32, v32, v33")
    e.i("v_mov_b32 v33, v32")
    e.i("v_permlane32_swap_b32 v32, v33")
    e.i("v_max_f32 v6, v32, v33")
    e.i("s_mov_b32 s90, %s" % f32(LOG2E))
    e.i("v_mul_f32 v33, s90, v6")
    for t in range(16):
        e.i("v_fma_f32 v%d, v%d, s90, -v33" % (SC + t, SC + t))
    for t in range(16):
        e.i("v_exp_f32 v%d, v%d" % (SC + t, SC + t))
    e.i("v_add_f32 v32, v%d, v%d" % (SC, SC + 1))
    e.i("v_add_f32 v33, v%d, v%d" % (SC + 2, SC + 3))
    for t in range(4, 16, 2):
        e.i("v_add_f32 v32, v32, v%d" % (SC + t))
        e.i("v_add_f32 v33, v33, v%d" % (SC + t + 1))
    e.i("v_add_f32 v5, v32, v33")
    for r in range(24):
        e.i("v_mov_b32 v%d, 0" % (ACC + r))
    e.i("v_mul_u32_u24 v60, 205, v1")
    e.i("v_lshrrev_b32 v60, 11, v60")
    e.i("v_mul_u32_u24 v61, 10, v60")
    e.i("v_sub_u32 v61, v1, v61")
    e.i("v_mul_u32_u24 v62, 1280, v60")
    e.i("v_lshlrev_b32 v63, 4, v61")
    e.i("v_add_u32 v62, v62, v63")
    e.i("v_mul_u32_u24 v3, 20, v1")
    e.i("s_mul_i32 s84, s%d, 192" % S_H)
    e.i("s_mul_i32 s83, s%d, 24" % S_W)
    e.i("s_add_u32 s84, s84, s83")
    e.i("s_mul_i32 s84, s84, 1280")
    e.i("s_mul_i32 s83, s%d, 160" % S_S)
    e.i("s_add_u32 s84, s84, s83")
    e.i("s_mul_i32 s85, s%d, 48" % S_H)
    e.i("s_mul_i32 s86, s%d, 6" % S_W)
    e.i("s_add_u32 s85, s85, s86")
    e.i("s_mul_i32 s85, s85, 1280")
    e.i("s_add_u32 s85, s85, s83")
    vt = list(range(32, 40))
    for t in range(16):
        e.wait_vm(("v", t, 2))
        fma_slot(e, slot(t), ACC, SC + t, vt)
        if t == 1:
            e.i("s_mov_b32 exec_hi, 0x0fffffff")
            for i in range(4):
                e.i("buffer_load_dwordx4 %s, v62, %s, s84 offen" % (R(64 + 4 * i, 4), S4(S_WO)), tag=("wo", i))
                if i < 3:
                    e.i("s_add_u32 s84, s84, %d" % (6 * 1280))
            e.i("buffer_load_dwordx4 %s, v62, %s, s85 offen" % (R(80, 4), S4(S_WD)), tag="wd")
            e.i("s_mov_b64 exec, -1")
        if t == 3:
            e.i("buffer_load_dwordx4 v[88:91], v3, %s, 0 offen" % S4(S_X), tag="gx0")
            e.i("buffer_load_dword v92, v3, %s, 0 offen offset:16" % S4(S_X), tag="gx1")
            e.i("buffer_load_dwordx4 v[96:99], v3, %s, 0 offen" % S4(S_GW), tag="gw0")
            e.i("buffer_load_dword v100, v3, %s, 0 offen offset:16" % S4(S_GW), tag="gw1")
            e.i("s_lshl_b32 s90, s%d, 2" % S_H)
            e.i("v_mov_b32 v101, s90")
            e.i("buffer_load_dword v102, v101, %s, 0 offen sc0 sc1" % S4(S_DBG), tag="cnt")
    stamp(e, 3)
    e.wait_vm("cnt")
    for k in range(5):
        e.i("v_lshlrev_b32 v44, 16, v%d" % (88 + k))
        e.i("v_and_b32 v45, s%d, v%d" % (S_MASK, 88 + k))
        e.i("v_lshlrev_b32 v46, 16, v%d" % (96 + k))
        e.i("v_and_b32 v47, s%d, v%d" % (S_MASK, 96 + k))
        e.i("v_mul_f32 v44, v44, v46")
        e.i("v_mul_f32 v45, v45, v47")
        bf16_round_pair(e, 44, 45, 46)
        if k == 0:
            e.i("v_add_f32 v48, v44, v45")
        else:
            e.i("v_add_f32 v48, v48, v44")
            e.i("v_add_f32 v48, v48, v45")
    reduce24(e, ACC)
    for k in range(6):
        e.i("ds_write_b32 v7, v%d offset:%d" % (ACC + 4 * k, (k >> 1) * 256 + (k & 1) * 16))
    dpp_full_reduce(e, [5, 48])
    e.i("s_mov_b32 s90, 0x3e000000")
    e.i("v_mul_f32 v5, s90, v5")
    e.i("s_lshl_b32 s90, s%d, 3" % S_W)
    e.i("s_add_u32 s90, s90, %d" % L_ML)
    e.i("v_mov_b32 v63, s90")
    e.i("v_mov_b32 v4, v6")
    e.i("s_mov_b32 exec_lo, 0")
    e.i("s_mov_b32 exec_hi, 0x80000000")
    e.i("ds_write_b64 v63, v[4:5]")
    e.i("s_mov_b64 exec, -1")
    bf16_round(e, 48, 44)
    e.i("s_mov_b32 s90, %s" % f32(LOG2E))
    e.i("v_mul_f32 v48, s90, v48")
    e.i("v_exp_f32 v48, -v48")
    e.i("v_add_f32 v48, 1.0, v48")
    e.i("v_rcp_f32 v48, v48")
    bf16_round(e, 48, 44)
    e.i("v_readlane_b32 s91, v48, 63")
    e.i("v_lshlrev_b32 v7, 2, v0")
    e.i("s_waitcnt lgkmcnt(0)")
    e.i("s_barrier")
    stamp(e, 4)
    e.i("s_lshl_b32 s86, s%d, 13" % S_H)
    e.i("s_cmp_ge_u32 s%d, 3" % S_W)
    e.i("s_cbranch_scc1 L_pub")
    e.i("v_mov_b32 v4, %d" % L_ML)
    for r in range(4):
        e.i("ds_read_b128 %s, v4 offset:%d" % (R(104 + 4 * r, 4), 16 * r))
    for w in range(8):
        e.i("ds_read_b32 v%d, v7 offset:%d" % (120 + w, w * 768))
    e.i("s_waitcnt lgkmcnt(0)")
    e.i("v_max3_f32 v128, v104, v106, v108")
    e.i("v_max3_f32 v129, v110, v112, v114")
    e.i("v_max3_f32 v128, v128, v116, v118")
    e.i("v_max_f32 v128, v128, v129")
    for w in range(8):
        e.i("v_sub_f32 v%d, v%d, v128" % (132 + w, 104 + 2 * w))
    for w in range(8):
        e.i("v_mul_f32 v%d, s90, v%d" % (132 + w, 132 + w))
    for w in range(8):
        e.i("v_exp_f32 v%d, v%d" % (132 + w, 132 + w))
    e.i("v_mul_f32 v130, v132, v120")
    e.i("v_mul_f32 v129, v132, v105")
    for w in range(1, 8):
        e.i("v_fmac_f32 v130, v%d, v%d" % (132 + w, 120 + w))
        e.i("v_fmac_f32 v129, v%d, v%d" % (132 + w, 105 + 2 * w))
    e.i("s_lshl_b32 s83, s%d, 10" % S_S)
    e.i("s_add_u32 s83, s83, s86")
    e.i("buffer_store_dword v130, v7, %s, s83 offen sc0 sc1" % S4(S_WS))
    e.i("s_cmp_lg_u32 s%d, 0" % S_W)
    e.i("s_cbranch_scc1 L_pub")
    e.i("s_mov_b64 exec, 1")
    e.i("buffer_store_dwordx2 v[128:129], v7, %s, s83 offen offset:768 sc0 sc1" % S4(S_WS))
    e.i("s_mov_b64 exec, -1")
    e.label("L_pub")
    e.i("s_nop 3")
    e.wait_vm_all()
    e.i("s_barrier")
    e.i("s_cmp_lg_u32 s%d, 0" % S_W)
    e.i("s_cbranch_scc1 L_polled")
    e.i("v_mov_b32 v104, 1")
    e.i("v_mov_b32 v105, 0")
    e.i("s_mov_b64 exec, 1")
    e.i("buffer_store_dword v104, v105, %s, s3 offen sc0 sc1" % S4(S_WS))
    e.i("s_mov_b64 exec, -1")
    stamp(e, 5)
    e.i("s_mov_b32 s83, 0")
    e.label("L_poll1")
    e.i("s_nop 3")
    e.i("v_readfirstlane_b32 s90, v102")
    e.i("s_cmp_ge_u32 s90, 8")
    e.i("s_cbranch_scc1 L_poll2")
    e.i("s_add_u32 s83, s83, 1")
    e.i("s_cmp_ge_u32 s83, 0x400000")
    e.i("s_cbranch_scc1 L_poll2")
    e.i("s_sleep 2")
    e.i("buffer_load_dword v102, v101, %s, 0 offen sc0 sc1" % S4(S_DBG))
    e.i("s_waitcnt vmcnt(0)")
    e.i("s_branch L_poll1")
    e.label("L_poll2")
    e.i("s_nop 3")
    e.i("s_andn2_b32 s90, s3, 0xff")
    e.i("v_and_b32 v105, 7, v1")
    e.i("v_lshlrev_b32 v105, 2, v105")
    e.label("L_poll3")
    e.i("s_nop 3")
    e.i("buffer_load_dword v104, v105, %s, s90 offen sc0 sc1" % S4(S_WS))
    e.i("s_waitcnt vmcnt(0)")
    e.i("v_cmp_ne_u32 vcc, 1, v104")
    e.i("s_cmp_eq_u64 vcc, 0")
    e.i("s_cbranch_scc1 L_polled")
    e.i("s_add_u32 s83, s83, 1")
    e.i("s_cmp_ge_u32 s83, 0x400000")
    e.i("s_cbranch_scc1 L_polled")
    e.i("s_sleep 1")
    e.i("s_branch L_poll3")
    e.label("L_polled")
    e.i("s_nop 3")
    e.i("s_barrier")
    stamp(e, 6)
    e.i("s_cmp_ge_u32 s%d, 3" % S_W)
    e.i("s_cbranch_scc1 L_rec_h")
    e.i("v_mov_b32 v8, 768")
    for s in range(8):
        e.i("s_add_u32 s87, s86, %d" % (s * 1024))
        e.i("buffer_load_dwordx2 %s, v8, %s, s87 offen sc0 sc1" % (R(104 + 2 * s, 2), S4(S_WS)))
        e.i("buffer_load_dword v%d, v7, %s, s87 offen sc0 sc1" % (120 + s, S4(S_WS)))
    e.i("s_waitcnt vmcnt(0)")
    e.i("v_max3_f32 v30, v104, v106, v108")
    e.i("v_max3_f32 v31, v110, v112, v114")
    e.i("v_max3_f32 v30, v30, v116, v118")
    e.i("v_max_f32 v30, v30, v31")
    e.i("s_mov_b32 s90, %s" % f32(LOG2E))
    for s in range(8):
        e.i("v_sub_f32 v%d, v%d, v30" % (32 + s, 104 + 2 * s))
    for s in range(8):
        e.i("v_mul_f32 v%d, s90, v%d" % (32 + s, 32 + s))
    for s in range(8):
        e.i("v_exp_f32 v%d, v%d" % (32 + s, 32 + s))
    e.i("v_mul_f32 v40, v32, v120")
    e.i("v_mul_f32 v41, v32, v105")
    for s in range(1, 8):
        e.i("v_fmac_f32 v40, v%d, v%d" % (32 + s, 120 + s))
        e.i("v_fmac_f32 v41, v%d, v%d" % (32 + s, 105 + 2 * s))
    e.i("v_rcp_f32 v42, v41")
    e.i("v_mul_f32 v43, v40, v42")
    e.i("v_fma_f32 v44, -v43, v41, v40")
    e.i("v_fmac_f32 v43, v44, v42")
    bf16_round(e, 43, 44)
    e.i("ds_write_b32 v7, v43 offset:%d" % T_O)
    e.i("s_branch L_rec_join")
    e.label("L_rec_h")
    e.i("s_nop 3")
    e.i("s_cmp_lg_u32 s%d, 3" % S_W)
    e.i("s_cbranch_scc1 L_rec_join")
    e.i("v_lshlrev_b32 v4, 2, v1")
    e.i("s_lshl_b32 s87, s%d, 12" % S_H)
    e.i("s_add_u32 s87, s87, %d" % REC2_OFF)
    for s in range(8):
        e.i("buffer_load_dword v%d, v4, %s, s87 offen offset:%d sc0 sc1" % (104 + s, S4(S_WS), s * 512))
        e.i("buffer_load_dword v%d, v4, %s, s87 offen offset:%d sc0 sc1" % (112 + s, S4(S_WS), s * 512 + 192))
    e.i("s_waitcnt vmcnt(0)")
    for o in (104, 112):
        for a, b in ((0, 1), (2, 3), (4, 5), (6, 7), (0, 2), (4, 6), (0, 4)):
            e.i("v_add_f32 v%d, v%d, v%d" % (o + a, o + a, o + b))
    bf16_round_pair(e, 104, 112, 105)
    e.i("v_mul_f32 v104, v104, v112")
    bf16_round(e, 104, 105)
    e.i("s_mov_b32 exec_hi, 0xffff")
    e.i("ds_write_b32 v4, v104 offset:%d" % (T_O + 768))
    e.i("s_mov_b64 exec, -1")
    e.label("L_rec_join")
    e.i("s_nop 3")
    e.i("s_waitcnt lgkmcnt(0)")
    e.i("s_barrier")
    stamp(e, 7)
    e.i("s_mul_i32 s90, s%d, 96" % S_W)
    e.i("v_lshlrev_b32 v8, 2, v60")
    e.i("v_add_u32 v9, s90, v8")
    for i in range(4):
        e.i("ds_read_b32 v%d, v9 offset:%d" % (50 + i, T_O + 24 * i))
    e.i("s_mul_i32 s90, s%d, 24" % S_W)
    e.i("v_add_u32 v9, s90, v8")
    e.i("ds_read_b32 v54, v9 offset:%d" % (T_O + 768))
    e.i("s_waitcnt lgkmcnt(0)")
    A, B = 120, 128
    for i in range(4):
        for k in range(4):
            e.i("v_lshlrev_b32 v44, 16, v%d" % (64 + 4 * i + k))
            e.i("v_and_b32 v45, s%d, v%d" % (S_MASK, 64 + 4 * i + k))
            op = "v_mul_f32" if i == 0 else "v_fmac_f32"
            e.i("%s v%d, v%d, v44" % (op, A + 2 * k, 50 + i))
            e.i("%s v%d, v%d, v45" % (op, A + 2 * k + 1, 50 + i))
    for k in range(4):
        e.i("v_lshlrev_b32 v44, 16, v%d" % (80 + k))
        e.i("v_and_b32 v45, s%d, v%d" % (S_MASK, 80 + k))
        e.i("v_mul_f32 v%d, v54, v44" % (B + 2 * k))
        e.i("v_mul_f32 v%d, v54, v45" % (B + 2 * k + 1))
    e.i("s_mul_i32 s90, s%d, %d" % (S_W, 6 * 320))
    e.i("v_mul_u32_u24 v8, 320, v60")
    e.i("v_lshlrev_b32 v9, 5, v61")
    e.i("v_add3_u32 v8, v8, v9, s90")
    e.i("s_mov_b32 exec_hi, 0x0fffffff")
    e.i("ds_write_b128 v8, %s offset:%d" % (R(A, 4), T_PA))
    e.i("ds_write_b128 v8, %s offset:%d" % (R(A + 4, 4), T_PA + 16))
    e.i("ds_write_b128 v8, %s offset:%d" % (R(B, 4), T_PB))
    e.i("ds_write_b128 v8, %s offset:%d" % (R(B + 4, 4), T_PB + 16))
    e.i("s_mov_b64 exec, -1")
    e.i("s_waitcnt lgkmcnt(0)")
    e.i("s_barrier")
    stamp(e, 8)
    e.i("s_cmp_ge_u32 s%d, 3" % S_W)
    e.i("s_cbranch_scc1 L_tail_sync")
    e.i("v_cmp_le_u32 vcc, 80, v0")
    e.i("v_mov_b32 v8, 0")
    e.i("v_mov_b32 v9, %d" % (15360 - 320))
    e.i("v_cndmask_b32 v8, v8, v9, vcc")
    e.i("v_add_u32 v8, v8, v7")
    for sl in range(48):
        e.i("ds_read_b32 v%d, v8 offset:%d" % (140 + sl, T_PA + sl * 320))
    e.i("s_waitcnt lgkmcnt(0)")
    for st in (24, 12, 6, 3):
        for k in range(st):
            e.i("v_add_f32 v%d, v%d, v%d" % (140 + k, 140 + k, 140 + k + st))
    e.i("v_add_f32 v140, v140, v141")
    e.i("v_add_f32 v140, v140, v142")
    e.i("s_lshl_b32 s90, s%d, 5" % S_S)
    e.i("s_add_u32 s90, s90, s%d" % S_H)
    e.i("s_mul_i32 s90, s90, 640")
    e.i("s_add_u32 s90, s90, %d" % PART_OFF)
    e.i("v_cmp_gt_u32 vcc, 160, v0")
    e.i("s_and_saveexec_b64 s[30:31], vcc")
    e.i("buffer_store_dword v140, v7, %s, s90 offen sc0 sc1" % S4(S_WS))
    e.i("s_mov_b64 exec, -1")
    e.label("L_tail_sync")
    e.i("s_nop 3")
    e.i("s_waitcnt vmcnt(0)")
    e.i("s_barrier")
    e.i("s_cmp_lg_u32 s%d, 0" % S_W)
    e.i("s_cbranch_scc1 L_tail_w")
    e.i("s_mov_b64 exec, 1")
    e.i("v_mov_b32 v8, 1")
    e.i("s_lshl_b32 s90, s%d, 2" % S_S)
    e.i("s_add_u32 s90, s90, 128")
    e.i("v_mov_b32 v9, s90")
    e.i("buffer_atomic_add v8, v9, %s, 0 offen sc0 sc1" % S4(S_DBG))
    e.i("s_waitcnt vmcnt(0)")
    e.i("v_mov_b32 v9, %d" % T_FLAG)
    e.i("ds_write_b32 v9, v8")
    e.i("s_mov_b64 exec, -1")
    e.label("L_tail_w")
    e.i("s_nop 3")
    e.i("s_waitcnt lgkmcnt(0)")
    e.i("s_barrier")
    e.i("v_mov_b32 v9, %d" % T_FLAG)
    e.i("ds_read_b32 v8, v9")
    e.i("s_waitcnt lgkmcnt(0)")
    stamp(e, 9)
    stamp_store(e, 15, 0)
    e.i("v_readfirstlane_b32 s90, v8")
    e.i("s_cmp_lg_u32 s90, 31")
    e.i("s_cbranch_scc1 L_exit")
    e.i("s_cmp_ge_u32 s%d, 3" % S_W)
    e.i("s_cbranch_scc1 L_tail_fin2")
    e.i("s_mul_i32 s90, s%d, %d" % (S_S, 32 * 640))
    e.i("s_add_u32 s90, s90, %d" % PART_OFF)
    for hh in range(32):
        e.i("buffer_load_dword v%d, v7, %s, s90 offen sc0 sc1" % (140 + hh, S4(S_WS)))
        if hh < 31:
            e.i("s_add_u32 s90, s90, 640")
    e.i("s_waitcnt vmcnt(0)")
    for st in (16, 8, 4, 2, 1):
        for k in range(st):
            e.i("v_add_f32 v%d, v%d, v%d" % (140 + k, 140 + k, 140 + k + st))
    bf16_round(e, 140, 141)
    e.i("ds_write_b32 v7, v140 offset:%d" % T_FIN)
    e.label("L_tail_fin2")
    e.i("s_nop 3")
    e.i("s_waitcnt lgkmcnt(0)")
    e.i("s_barrier")
    e.i("s_cmp_ge_u32 s%d, 2" % S_W)
    e.i("s_cbranch_scc1 L_exit")
    e.i("ds_read_b32 v8, v7 offset:%d" % T_FIN)
    e.i("ds_read_b32 v9, v7 offset:%d" % (T_FIN + 320))
    e.i("s_waitcnt lgkmcnt(0)")
    e.i("v_mul_f32 v8, s91, v8")
    e.i("v_mov_b32 v10, s91")
    e.i("v_sub_f32 v10, 1.0, v10")
    bf16_round(e, 10, 11)
    e.i("v_mul_f32 v9, v10, v9")
    bf16_round_pair(e, 8, 9, 11)
    e.i("v_add_f32 v8, v8, v9")
    e.i("v_cvt_pk_bf16_f32 v8, v8, v8")
    e.i("s_mul_i32 s90, s%d, 160" % S_S)
    e.i("v_lshlrev_b32 v9, 1, v0")
    e.i("v_cmp_gt_u32 vcc, 80, v0")
    e.i("s_and_saveexec_b64 s[30:31], vcc")
    e.i("buffer_store_short v8, v9, %s, s90 offen" % S4(S_OUT))
    e.i("s_mov_b64 exec, -1")
    stamp(e, 10)
    stamp_store(e, 15, 0)
    e.label("L_exit")
    e.i("s_endpgm")


def descriptor(name, vgpr, sgpr=102):
    acc = (vgpr + 3) // 4 * 4
    return """.p2align 6
.amdhsa_kernel %s
  .amdhsa_next_free_vgpr %d
  .amdhsa_next_free_sgpr %d
  .amdhsa_accum_offset %d
  .amdhsa_group_segment_fixed_size 0
  .amdhsa_kernarg_size 104
  .amdhsa_user_sgpr_count 2
  .amdhsa_user_sgpr_kernarg_segment_ptr 1
  .amdhsa_system_sgpr_workgroup_id_x 1
.end_amdhsa_kernel
""" % (name, vgpr, sgpr, acc)


KPRE = 5
KLATE = False
QBAR = False


def main():
    global STAMPS, KPRE, KLATE, NT, QBAR
    outf = OUT
    for a in sys.argv[1:]:
        if a == "stamps":
            STAMPS = True
        elif a.startswith("out="):
            outf = a[4:]
        elif a.startswith("kpre="):
            KPRE = int(a[5:])
        elif a == "klate":
            KLATE = True
        elif a == "qbar":
            QBAR = True
        elif a == "nont":
            NT = ""
    ref = open(OUT + ".ref").read().splitlines()
    head = []
    for ln in ref:
        if ln.startswith(";") and "@launch" not in ln:
            head.append(ln)
        elif ln.startswith(";"):
            continue
        else:
            break
    e1 = Emit()
    fused_kernel(e1)
    txt = "\n".join(head) + "\n"
    txt += "; @launch grid=(256,1,1) block=(512,1,1) lds=%d\n" % (FUSED_LDS + 192)
    txt += '.amdgcn_target "amdgcn-amd-amdhsa--gfx950"\n.text\n'
    txt += e1.text()
    txt += '.section .rodata,"a"\n'
    txt += descriptor(KNAME, 256)
    open(outf, "w").write(txt)


if __name__ == "__main__":
    main()
```

```python
import struct
import sys

sys.path.insert(0, "gen")
from emit import Emit

OUT = "gated_mix__gqa_block_cached__glu_gated_bilinear__decode.s"


def f32(x):
    return "0x%08x" % struct.unpack("<I", struct.pack("<f", x))[0]


LOG2E = 1.4426950408889634
SCALE = 192 ** -0.5

KV_BYTES = 100663296
WQ_BYTES = 640 * 6144 * 2
WO_BYTES = 6144 * 640 * 2
WG_BYTES = 640 * 1536 * 2
WD_BYTES = 1536 * 640 * 2
WS_BYTES = 402653184
PART_OFF = 0x100000

S_K, S_V, S_WQ, S_X, S_WG, S_WU, S_WS, S_WO, S_WD, S_GW, S_OUT, S_DBG = (
    32, 36, 40, 44, 48, 52, 56, 60, 64, 68, 72, 76)
S_H, S_S, S_W = 80, 81, 82
S_MASK = 89

NT = " nt"
STAMPS = False
STAMP_OFF = 0x800000


STAMP_REGS = [92, 94, 96, 98, 100, 4, 6, 8, 10, 12, 14, 16, 18, 20, 22, 24, 26]


def stamp(e, n):
    if STAMPS:
        e.i("s_memrealtime s[%d:%d]" % (STAMP_REGS[n], STAMP_REGS[n] + 1))


def stamp_store(e, nst, kidx, va=250, vb=251):
    if not STAMPS:
        return
    e.i("s_waitcnt lgkmcnt(0)")
    e.i("s_lshl_b32 s90, s2, 3")
    e.i("s_add_u32 s90, s90, s%d" % S_W)
    e.i("s_lshl_b32 s90, s90, 7")
    e.i("s_add_u32 s90, s90, %d" % (STAMP_OFF + kidx * 0x100000))
    e.i("s_mov_b64 exec, 1")
    e.i("v_mov_b32 v%d, 0" % va)
    for n in range(nst):
        e.i("v_mov_b32 v%d, s%d" % (vb, STAMP_REGS[n]))
        e.i("buffer_store_dword v%d, v%d, %s, s90 offen offset:%d" % (vb, va, S4(S_WS), 4 * n))
    e.i("s_mov_b64 exec, -1")


def srd(e, base, ptr, nbytes):
    e.i("s_mov_b32 s%d, s%d" % (base, ptr))
    e.i("s_and_b32 s%d, s%d, 0xffff" % (base + 1, ptr + 1))
    e.i("s_mov_b32 s%d, %d" % (base + 2, nbytes))
    e.i("s_mov_b32 s%d, 0x00020000" % (base + 3))


def R(a, n):
    return "v[%d:%d]" % (a, a + n - 1)


def S4(a):
    return "s[%d:%d]" % (a, a + 3)


def common_prologue(e, exit_label):
    e.i("s_cmp_ge_u32 s2, 256")
    e.i("s_cbranch_scc1 %s" % exit_label)
    e.i("s_load_dwordx16 s[4:19], s[0:1], 0")
    e.i("s_load_dwordx8 s[20:27], s[0:1], 64")
    e.i("s_load_dwordx2 s[28:29], s[0:1], 96")
    e.i("v_and_b32 v1, 63, v0")
    e.i("v_lshrrev_b32 v4, 6, v0")
    e.i("v_readfirstlane_b32 s%d, v4" % S_W)
    e.i("s_and_b32 s%d, s2, 7" % S_H)
    e.i("s_lshl_b32 s%d, s%d, 2" % (S_H, S_H))
    e.i("s_lshr_b32 s%d, s2, 3" % S_S)
    e.i("s_and_b32 s83, s%d, 3" % S_S)
    e.i("s_add_u32 s%d, s%d, s83" % (S_H, S_H))
    e.i("s_lshr_b32 s%d, s2, 5" % S_S)
    e.i("s_mov_b32 s%d, 0xffff0000" % S_MASK)


def dpp_full_reduce(e, regs):
    for mod in ("row_shr:1 row_mask:0xf bank_mask:0xf bound_ctrl:0",
                "row_shr:2 row_mask:0xf bank_mask:0xf bound_ctrl:0",
                "row_shr:4 row_mask:0xf bank_mask:0xf bound_ctrl:0",
                "row_shr:8 row_mask:0xf bank_mask:0xf bound_ctrl:0",
                "row_bcast:15 row_mask:0xa bank_mask:0xf",
                "row_bcast:31 row_mask:0xc bank_mask:0xf"):
        for r in regs:
            e.i("v_add_f32_dpp v%d, v%d, v%d %s" % (r, r, r, mod))


def reduce24(e, acc):
    for i in range(12):
        e.i("v_permlane32_swap_b32 v%d, v%d" % (acc + 2 * i, acc + 2 * i + 1))
    for i in range(12):
        e.i("v_add_f32 v%d, v%d, v%d" % (acc + 2 * i, acc + 2 * i, acc + 2 * i + 1))
    for k in range(6):
        e.i("v_permlane16_swap_b32 v%d, v%d" % (acc + 4 * k, acc + 4 * k + 2))
    for k in range(6):
        e.i("v_add_f32 v%d, v%d, v%d" % (acc + 4 * k, acc + 4 * k, acc + 4 * k + 2))
    for k in range(6):
        e.i("v_add_f32_dpp v%d, v%d, v%d row_ror:8 row_mask:0xf bank_mask:0xf" % (acc + 4 * k, acc + 4 * k, acc + 4 * k))


def fma_slot(e, base, acc, coef, temps):
    nt = len(temps)
    for k in range(12):
        t0 = temps[(2 * k) % nt]
        t1 = temps[(2 * k + 1) % nt]
        e.i("v_lshlrev_b32 v%d, 16, v%d" % (t0, base + k))
        e.i("v_and_b32 v%d, s%d, v%d" % (t1, S_MASK, base + k))
        e.i("v_fmac_f32 v%d, v%d, v%d" % (acc + 2 * k, coef, t0))
        e.i("v_fmac_f32 v%d, v%d, v%d" % (acc + 2 * k + 1, coef, t1))


def bf16_round_pair(e, a, b, t):
    e.i("v_cvt_pk_bf16_f32 v%d, v%d, v%d" % (t, a, b))
    e.i("v_lshlrev_b32 v%d, 16, v%d" % (a, t))
    e.i("v_and_b32 v%d, s%d, v%d" % (b, S_MASK, t))


def bf16_round(e, a, t):
    e.i("v_cvt_pk_bf16_f32 v%d, v%d, v%d" % (t, a, a))
    e.i("v_lshlrev_b32 v%d, 16, v%d" % (a, t))


L_RED = 0
L_FFN = 6144
L_QB = 9216
L_ML = 9600
MAIN_LDS = 10240

ACC = 8
QR = 32
SC = 44
SLOT0 = 64


def slot(t):
    return SLOT0 + 12 * t


def kv_loads(e, srdbase, t, tagp):
    e.i("s_add_u32 s88, s87, %d" % (t * 3072))
    for j in range(3):
        e.i("buffer_load_dwordx4 %s, v2, %s, s88 offen offset:%d%s" % (R(slot(t) + 4 * j, 4), S4(srdbase), j * 128, NT),
            tag=(tagp, t, j))


FLAG_OFF = 0x200000
REC2_OFF = 0x80000
QREC_OFF = 0x300000
KNAME = "gated_mix__gqa_block_cached__glu_gated_bilinear__decode_kernel"

T_O = 10240
T_PA = T_O + 1024
T_PB = T_PA + 15360
T_FIN = T_PB + 15360
T_FLAG = T_FIN + 1024
FUSED_LDS = T_FLAG + 64


def fused_kernel(e):
    name = KNAME
    e.raw(".globl %s" % name)
    e.raw(".p2align 8")
    e.raw(".type %s,@function" % name)
    e.raw("%s:" % name)
    common_prologue(e, "L_exit")
    e.i("v_lshrrev_b32 v4, 3, v1")
    e.i("v_and_b32 v5, 7, v1")
    e.i("v_lshlrev_b32 v5, 4, v5")
    e.i("v_mul_u32_u24 v2, 0x180, v4")
    e.i("v_add_u32 v2, v2, v5")
    e.i("v_mul_u32_u24 v3, 12288, v4")
    e.i("v_add_u32 v3, v3, v5")
    e.i("v_mul_u32_u24 v7, 3072, v4")
    e.i("v_add_u32 v7, v7, v5")
    e.i("v_lshlrev_b32 v55, 1, v4")
    for r in list(range(32, 48)) + [54, 60] + [slot(15) + r for r in range(12)]:
        e.i("v_mov_b32 v%d, 0" % r)
    e.i("s_mul_i32 s86, s%d, 80" % S_S)
    e.i("s_mul_i32 s83, s%d, 10" % S_W)
    e.i("s_add_u32 s86, s86, s83")
    e.i("s_lshl_b32 s88, s86, 1")
    e.i("s_mul_i32 s85, s86, 12288")
    e.i("s_mul_i32 s83, s%d, 384" % S_H)
    e.i("s_add_u32 s85, s85, s83")
    e.i("s_add_u32 s84, s85, %d" % (8 * 12288))
    e.i("s_mul_i32 s86, s86, 3072")
    e.i("s_mul_i32 s83, s%d, 96" % S_H)
    e.i("s_add_u32 s86, s86, s83")
    e.i("s_add_u32 s90, s86, %d" % (8 * 3072))
    e.i("s_mul_i32 s87, s%d, %d" % (S_H, 8192 * 384))
    e.i("s_mul_i32 s83, s%d, %d" % (S_S, 1024 * 384))
    e.i("s_add_u32 s87, s87, s83")
    e.i("s_mul_i32 s83, s%d, %d" % (S_W, 128 * 384))
    e.i("s_add_u32 s87, s87, s83")
    e.i("s_lshl_b32 s91, s%d, 8" % S_H)
    e.i("s_lshl_b32 s83, s%d, 2" % S_S)
    e.i("s_add_u32 s91, s91, s83")
    e.i("s_add_u32 s3, s91, %d" % FLAG_OFF)
    e.i("s_waitcnt lgkmcnt(0)")
    stamp(e, 0)
    srd(e, S_X, 4, 1280)
    srd(e, S_WG, 16, WG_BYTES)
    srd(e, S_WU, 18, WG_BYTES)
    srd(e, S_WQ, 10, WQ_BYTES)
    srd(e, S_K, 6, KV_BYTES)
    srd(e, S_WS, 28, WS_BYTES)
    e.i("buffer_load_ushort v53, v55, %s, s88 offen" % S4(S_X), tag="xa")
    for j in range(3):
        e.i("buffer_load_dwordx4 %s, v3, %s, s85 offen offset:%d" % (R(slot(14) + 4 * j, 4), S4(S_WQ), j * 128), tag=("wq", 0, j))
    e.i("s_mov_b32 exec_lo, 0x3f3f3f3f")
    e.i("s_mov_b32 exec_hi, 0x3f3f3f3f")
    e.i("buffer_load_dwordx4 v[32:35], v7, %s, s86 offen" % S4(S_WG), tag="ga")
    e.i("buffer_load_dwordx4 v[40:43], v7, %s, s86 offen" % S4(S_WU), tag="ua")
    e.i("s_mov_b64 exec, 0x3f3f")
    e.i("buffer_load_dwordx4 v[36:39], v7, %s, s90 offen" % S4(S_WG), tag="gb")
    e.i("buffer_load_dwordx4 v[44:47], v7, %s, s90 offen" % S4(S_WU), tag="ub")
    e.i("s_mov_b64 exec, 0xffff")
    e.i("buffer_load_ushort v54, v55, %s, s88 offen offset:16" % S4(S_X), tag="xb")
    for j in range(3):
        e.i("buffer_load_dwordx4 %s, v3, %s, s84 offen offset:%d" % (R(slot(15) + 4 * j, 4), S4(S_WQ), j * 128), tag=("wq", 1, j))
    e.i("s_mov_b64 exec, -1")
    srd(e, S_V, 8, KV_BYTES)
    srd(e, S_GW, 22, 1280)
    srd(e, S_WO, 12, WO_BYTES)
    srd(e, S_WD, 20, WD_BYTES)
    srd(e, S_OUT, 24, 1280)
    srd(e, S_DBG, 26, 256)
    e.i("s_cmp_eq_u32 s%d, 0" % S_W)
    e.i("s_cbranch_scc1 L_nokpre")
    save = (e.vm_issued, e.vm_done)
    for t in range(KPRE):
        kv_loads(e, S_K, t, "k")
    e.label("L_nokpre")
    e.i("s_nop 3")
    FA = [slot(13) + r for r in range(12)] + [56, 57, 58, 59]
    e.i("s_cmp_eq_u32 s%d, 0" % S_W)
    e.i("s_cbranch_scc0 L_w17")
    e.i("s_waitcnt vmcnt(0)")
    e.label("L_w17")
    e.i("s_nop 3")
    e.wait_vm(("wq", 1, 2))
    stamp(e, 11)
    e.i("v_lshlrev_b32 v53, 16, v53")
    e.i("v_lshlrev_b32 v54, 16, v54")
    for m, (ra, rb) in enumerate(((32, 36), (40, 44))):
        for k in range(4):
            e.i("v_lshlrev_b32 v60, 16, v%d" % (ra + k))
            e.i("v_and_b32 v61, s%d, v%d" % (S_MASK, ra + k))
            e.i("v_lshlrev_b32 v62, 16, v%d" % (rb + k))
            e.i("v_and_b32 v63, s%d, v%d" % (S_MASK, rb + k))
            e.i("v_mul_f32 v%d, v53, v60" % FA[m * 8 + 2 * k])
            e.i("v_mul_f32 v%d, v53, v61" % FA[m * 8 + 2 * k + 1])
            e.i("v_fmac_f32 v%d, v54, v62" % FA[m * 8 + 2 * k])
            e.i("v_fmac_f32 v%d, v54, v63" % FA[m * 8 + 2 * k + 1])
    for k in range(12):
        e.i("v_lshlrev_b32 v60, 16, v%d" % (slot(14) + k))
        e.i("v_and_b32 v61, s%d, v%d" % (S_MASK, slot(14) + k))
        e.i("v_lshlrev_b32 v62, 16, v%d" % (slot(15) + k))
        e.i("v_and_b32 v63, s%d, v%d" % (S_MASK, slot(15) + k))
        e.i("v_mul_f32 v%d, v53, v60" % (ACC + 2 * k))
        e.i("v_mul_f32 v%d, v53, v61" % (ACC + 2 * k + 1))
        e.i("v_fmac_f32 v%d, v54, v62" % (ACC + 2 * k))
        e.i("v_fmac_f32 v%d, v54, v63" % (ACC + 2 * k + 1))
    for i in range(8):
        e.i("v_permlane32_swap_b32 v%d, v%d" % (FA[2 * i], FA[2 * i + 1]))
    for i in range(8):
        e.i("v_add_f32 v%d, v%d, v%d" % (FA[2 * i], FA[2 * i], FA[2 * i + 1]))
    for k in range(4):
        e.i("v_permlane16_swap_b32 v%d, v%d" % (FA[4 * k], FA[4 * k + 2]))
    for k in range(4):
        e.i("v_add_f32 v%d, v%d, v%d" % (FA[4 * k], FA[4 * k], FA[4 * k + 2]))
    for k in range(4):
        e.i("v_add_f32_dpp v%d, v%d, v%d row_ror:8 row_mask:0xf bank_mask:0xf" % (FA[4 * k], FA[4 * k], FA[4 * k]))
    reduce24(e, ACC)
    e.i("v_and_b32 v4, 7, v1")
    e.i("v_lshlrev_b32 v4, 5, v4")
    e.i("v_bfe_u32 v5, v1, 4, 1")
    e.i("v_lshlrev_b32 v5, 3, v5")
    e.i("v_add_u32 v4, v4, v5")
    e.i("v_bfe_u32 v5, v1, 5, 1")
    e.i("v_lshlrev_b32 v5, 2, v5")
    e.i("v_add_u32 v7, v4, v5")
    e.i("s_mul_i32 s90, s%d, 384" % S_W)
    e.i("v_add_u32 v60, s90, v7")
    e.i("s_mul_i32 s90, s%d, 768" % S_W)
    e.i("v_add_u32 v7, s90, v7")
    for k in range(6):
        e.i("ds_write_b32 v7, v%d offset:%d" % (ACC + 4 * k, (k >> 1) * 256 + (k & 1) * 16))
    e.i("s_mov_b32 exec_lo, 0x3f3f3f3f")
    e.i("s_mov_b32 exec_hi, 0x3f3f3f3f")
    for k in range(4):
        e.i("ds_write_b32 v60, v%d offset:%d" % (FA[4 * k], L_FFN + (k >> 1) * 192 + (k & 1) * 16))
    e.i("s_mov_b64 exec, -1")
    e.i("s_waitcnt lgkmcnt(0)")
    e.i("s_barrier")
    e.i("s_cmp_eq_u32 s%d, 0" % S_W)
    e.i("s_cbranch_scc1 L_sync0")
    for t in range(KPRE, 16):
        kv_loads(e, S_K, t, "k")
    e.i("s_branch L_q_join")
    e.label("L_sync0")
    e.i("s_nop 3")
    after = (e.vm_issued, e.vm_done, dict(e.tagpos))
    e.i("v_lshlrev_b32 v4, 2, v1")
    for w in range(8):
        for i in range(3):
            e.i("ds_read_b32 v%d, v4 offset:%d" % (64 + 8 * i + w, w * 768 + i * 256))
        e.i("ds_read_b32 v%d, v4 offset:%d" % (88 + w, L_FFN + w * 384))
        e.i("ds_read_b32 v%d, v4 offset:%d" % (96 + w, L_FFN + w * 384 + 192))
    e.i("s_waitcnt lgkmcnt(0)")
    for o in (64, 72, 80, 88, 96):
        for a, b in ((0, 1), (2, 3), (4, 5), (6, 7), (0, 2), (4, 6), (0, 4)):
            e.i("v_add_f32 v%d, v%d, v%d" % (o + a, o + a, o + b))
    e.i("s_lshl_b32 s90, s%d, 3" % S_H)
    e.i("s_add_u32 s90, s90, s%d" % S_S)
    e.i("s_lshl_b32 s83, s90, 10")
    e.i("s_add_u32 s83, s83, %d" % QREC_OFF)
    for i in range(3):
        e.i("buffer_store_dword v%d, v4, %s, s83 offen offset:%d sc0 sc1" % (64 + 8 * i, S4(S_WS), i * 256))
    e.i("s_lshl_b32 s90, s90, 9")
    e.i("s_add_u32 s90, s90, %d" % REC2_OFF)
    e.i("s_mov_b32 exec_hi, 0xffff")
    e.i("buffer_store_dword v88, v4, %s, s90 offen sc0 sc1" % S4(S_WS))
    e.i("buffer_store_dword v96, v4, %s, s90 offen offset:192 sc0 sc1" % S4(S_WS))
    e.i("s_mov_b64 exec, 1")
    e.i("v_mov_b32 v60, 0")
    e.i("buffer_store_dword v60, v60, %s, s3 offen sc0 sc1" % S4(S_WS))
    e.i("s_waitcnt vmcnt(0)")
    e.i("v_mov_b32 v56, 1")
    e.i("s_lshl_b32 s90, s%d, 2" % S_H)
    e.i("v_mov_b32 v57, s90")
    e.i("buffer_atomic_add v56, v57, %s, 0 offen sc1" % S4(S_DBG))
    e.i("s_mov_b64 exec, -1")
    e.i("v_mov_b32 v57, s90")
    stamp(e, 12)
    e.i("s_mov_b32 s83, 0")
    e.label("L_qpoll")
    e.i("s_nop 3")
    e.i("buffer_load_dword v56, v57, %s, 0 offen sc0 sc1" % S4(S_DBG))
    e.i("s_waitcnt vmcnt(0)")
    e.i("v_readfirstlane_b32 s90, v56")
    e.i("s_cmp_ge_u32 s90, 8")
    e.i("s_cbranch_scc1 L_qready")
    e.i("s_add_u32 s83, s83, 1")
    e.i("s_cmp_ge_u32 s83, 0x400000")
    e.i("s_cbranch_scc1 L_qready")
    e.i("s_sleep 2")
    e.i("s_branch L_qpoll")
    e.label("L_qready")
    e.i("s_nop 3")
    stamp(e, 13)
    e.i("s_lshl_b32 s83, s%d, 13" % S_H)
    e.i("s_add_u32 s83, s83, %d" % QREC_OFF)
    for sp in range(8):
        for i in range(3):
            e.i("buffer_load_dword v%d, v4, %s, s83 offen offset:%d sc0 sc1" % (64 + 8 * i + sp, S4(S_WS), i * 256))
        if sp < 7:
            e.i("s_add_u32 s83, s83, 1024")
    e.i("s_waitcnt vmcnt(0)")
    for o in (64, 72, 80):
        for a, b in ((0, 1), (2, 3), (4, 5), (6, 7), (0, 2), (4, 6), (0, 4)):
            e.i("v_add_f32 v%d, v%d, v%d" % (o + a, o + a, o + b))
    e.i("v_lshlrev_b32 v4, 1, v1")
    for i in range(3):
        e.i("v_cvt_pk_bf16_f32 v%d, v%d, v%d" % (64 + 8 * i, 64 + 8 * i, 64 + 8 * i))
    for i in range(3):
        e.i("ds_write_b16 v4, v%d offset:%d" % (64 + 8 * i, L_QB + i * 128))
    e.i("s_waitcnt lgkmcnt(0)")
    stamp(e, 14)
    for t in range(16):
        kv_loads(e, S_K, t, "kk")
    e.vm_issued, e.vm_done, e.tagpos = after
    e.label("L_q_join")
    e.i("s_nop 3")
    e.i("s_barrier")
    e.i("v_and_b32 v4, 7, v1")
    e.i("v_lshlrev_b32 v4, 4, v4")
    for j in range(3):
        e.i("ds_read_b128 %s, v4 offset:%d" % (R(QR + 4 * j, 4), L_QB + j * 128))
    e.i("s_waitcnt lgkmcnt(0)")
    stamp(e, 1)
    chains = ((4, 5, 6), (60, 61, 62))
    for t in range(16):
        c = chains[t & 1]
        for j in range(3):
            e.i("v_mov_b32 v%d, 0" % c[j])
        for j in range(3):
            e.wait_vm(("k", t, j))
            for r in range(4):
                e.i("v_dot2c_f32_bf16 v%d, v%d, v%d" % (c[j], slot(t) + 4 * j + r, QR + 4 * j + r))
        kv_loads(e, S_V, t, "v")
        if t:
            p = chains[(t - 1) & 1]
            e.i("v_add_f32 v%d, v%d, v%d" % (SC + t - 1, p[0], p[1]))
            e.i("v_add_f32 v%d, v%d, v%d" % (SC + t - 1, SC + t - 1, p[2]))
    stamp(e, 2)
    p = chains[1]
    e.i("v_add_f32 v%d, v%d, v%d" % (SC + 15, p[0], p[1]))
    e.i("v_add_f32 v%d, v%d, v%d" % (SC + 15, SC + 15, p[2]))
    for mod in ("quad_perm:[1,0,3,2]", "quad_perm:[2,3,0,1]", "row_half_mirror"):
        for t in range(16):
            e.i("v_add_f32_dpp v%d, v%d, v%d %s row_mask:0xf bank_mask:0xf" % (SC + t, SC + t, SC + t, mod))
    e.i("s_mov_b32 s90, %s" % f32(SCALE))
    for t in range(0, 16, 2):
        bf16_round_pair(e, SC + t, SC + t + 1, 32 + (t >> 1))
    for t in range(16):
        e.i("v_mul_f32 v%d, s90, v%d" % (SC + t, SC + t))
    for t in range(0, 16, 2):
        bf16_round_pair(e, SC + t, SC + t + 1, 32 + (t >> 1))
    e.i("v_max3_f32 v32, v%d, v%d, v%d" % (SC, SC + 1, SC + 2))
    e.i("v_max3_f32 v33, v%d, v%d, v%d" % (SC + 3, SC + 4, SC + 5))
    e.i("v_max3_f32 v34, v%d, v%d, v%d" % (SC + 6, SC + 7, SC + 8))
    e.i("v_max3_f32 v35, v%d, v%d, v%d" % (SC + 9, SC + 10, SC + 11))
    e.i("v_max3_f32 v36, v%d, v%d, v%d" % (SC + 12, SC + 13, SC + 14))
    e.i("v_max3_f32 v32, v32, v33, v%d" % (SC + 15))
    e.i("v_max3_f32 v34, v34, v35, v36")
    e.i("v_max_f32 v32, v32, v34")
    e.i("v_max_f32_dpp v32, v32, v32 row_ror:8 row_mask:0xf bank_mask:0xf")
    e.i("v_mov_b32 v33, v32")
    e.i("v_permlane16_swap_b32 v32, v33")
    e.i("v_max_f32 v32, v32, v33")
    e.i("v_mov_b32 v33, v32")
    e.i("v_permlane32_swap_b32 v32, v33")
    e.i("v_max_f32 v6, v32, v33")
    e.i("s_mov_b32 s90, %s" % f32(LOG2E))
    e.i("v_mul_f32 v33, s90, v6")
    for t in range(16):
        e.i("v_fma_f32 v%d, v%d, s90, -v33" % (SC + t, SC + t))
    for t in range(16):
        e.i("v_exp_f32 v%d, v%d" % (SC + t, SC + t))
    e.i("v_add_f32 v32, v%d, v%d" % (SC, SC + 1))
    e.i("v_add_f32 v33, v%d, v%d" % (SC + 2, SC + 3))
    for t in range(4, 16, 2):
        e.i("v_add_f32 v32, v32, v%d" % (SC + t))
        e.i("v_add_f32 v33, v33, v%d" % (SC + t + 1))
    e.i("v_add_f32 v5, v32, v33")
    for r in range(24):
        e.i("v_mov_b32 v%d, 0" % (ACC + r))
    e.i("v_mul_u32_u24 v60, 205, v1")
    e.i("v_lshrrev_b32 v60, 11, v60")
    e.i("v_mul_u32_u24 v61, 10, v60")
    e.i("v_sub_u32 v61, v1, v61")
    e.i("v_mul_u32_u24 v62, 1280, v60")
    e.i("v_lshlrev_b32 v63, 4, v61")
    e.i("v_add_u32 v62, v62, v63")
    e.i("v_mul_u32_u24 v3, 20, v1")
    e.i("s_mul_i32 s84, s%d, 192" % S_H)
    e.i("s_mul_i32 s83, s%d, 24" % S_W)
    e.i("s_add_u32 s84, s84, s83")
    e.i("s_mul_i32 s84, s84, 1280")
    e.i("s_mul_i32 s83, s%d, 160" % S_S)
    e.i("s_add_u32 s84, s84, s83")
    e.i("s_mul_i32 s85, s%d, 48" % S_H)
    e.i("s_mul_i32 s86, s%d, 6" % S_W)
    e.i("s_add_u32 s85, s85, s86")
    e.i("s_mul_i32 s85, s85, 1280")
    e.i("s_add_u32 s85, s85, s83")
    vt = list(range(32, 40))
    for t in range(16):
        e.wait_vm(("v", t, 2))
        fma_slot(e, slot(t), ACC, SC + t, vt)
        if t == 1:
            e.i("s_mov_b32 exec_hi, 0x0fffffff")
            for i in range(4):
                e.i("buffer_load_dwordx4 %s, v62, %s, s84 offen" % (R(64 + 4 * i, 4), S4(S_WO)), tag=("wo", i))
                if i < 3:
                    e.i("s_add_u32 s84, s84, %d" % (6 * 1280))
            e.i("buffer_load_dwordx4 %s, v62, %s, s85 offen" % (R(80, 4), S4(S_WD)), tag="wd")
            e.i("s_mov_b64 exec, -1")
        if t == 3:
            e.i("buffer_load_dwordx4 v[88:91], v3, %s, 0 offen" % S4(S_X), tag="gx0")
            e.i("buffer_load_dword v92, v3, %s, 0 offen offset:16" % S4(S_X), tag="gx1")
            e.i("buffer_load_dwordx4 v[96:99], v3, %s, 0 offen" % S4(S_GW), tag="gw0")
            e.i("buffer_load_dword v100, v3, %s, 0 offen offset:16" % S4(S_GW), tag="gw1")
            e.i("s_lshl_b32 s90, s%d, 2" % S_H)
            e.i("v_mov_b32 v101, s90")
            e.i("buffer_load_dword v102, v101, %s, 0 offen sc0 sc1" % S4(S_DBG), tag="cnt")
    stamp(e, 3)
    e.wait_vm("cnt")
    for k in range(5):
        e.i("v_lshlrev_b32 v44, 16, v%d" % (88 + k))
        e.i("v_and_b32 v45, s%d, v%d" % (S_MASK, 88 + k))
        e.i("v_lshlrev_b32 v46, 16, v%d" % (96 + k))
        e.i("v_and_b32 v47, s%d, v%d" % (S_MASK, 96 + k))
        e.i("v_mul_f32 v44, v44, v46")
        e.i("v_mul_f32 v45, v45, v47")
        bf16_round_pair(e, 44, 45, 46)
        if k == 0:
            e.i("v_add_f32 v48, v44, v45")
        else:
            e.i("v_add_f32 v48, v48, v44")
            e.i("v_add_f32 v48, v48, v45")
    reduce24(e, ACC)
    for k in range(6):
        e.i("ds_write_b32 v7, v%d offset:%d" % (ACC + 4 * k, (k >> 1) * 256 + (k & 1) * 16))
    dpp_full_reduce(e, [5, 48])
    e.i("s_mov_b32 s90, 0x3e000000")
    e.i("v_mul_f32 v5, s90, v5")
    e.i("s_lshl_b32 s90, s%d, 3" % S_W)
    e.i("s_add_u32 s90, s90, %d" % L_ML)
    e.i("v_mov_b32 v63, s90")
    e.i("v_mov_b32 v4, v6")
    e.i("s_mov_b32 exec_lo, 0")
    e.i("s_mov_b32 exec_hi, 0x80000000")
    e.i("ds_write_b64 v63, v[4:5]")
    e.i("s_mov_b64 exec, -1")
    bf16_round(e, 48, 44)
    e.i("s_mov_b32 s90, %s" % f32(LOG2E))
    e.i("v_mul_f32 v48, s90, v48")
    e.i("v_exp_f32 v48, -v48")
    e.i("v_add_f32 v48, 1.0, v48")
    e.i("v_rcp_f32 v48, v48")
    bf16_round(e, 48, 44)
    e.i("v_readlane_b32 s91, v48, 63")
    e.i("v_lshlrev_b32 v7, 2, v0")
    e.i("s_waitcnt lgkmcnt(0)")
    e.i("s_barrier")
    stamp(e, 4)
    e.i("s_lshl_b32 s86, s%d, 13" % S_H)
    e.i("s_cmp_ge_u32 s%d, 3" % S_W)
    e.i("s_cbranch_scc1 L_pub")
    e.i("v_mov_b32 v4, %d" % L_ML)
    for r in range(4):
        e.i("ds_read_b128 %s, v4 offset:%d" % (R(104 + 4 * r, 4), 16 * r))
    for w in range(8):
        e.i("ds_read_b32 v%d, v7 offset:%d" % (120 + w, w * 768))
    e.i("s_waitcnt lgkmcnt(0)")
    e.i("v_max3_f32 v128, v104, v106, v108")
    e.i("v_max3_f32 v129, v110, v112, v114")
    e.i("v_max3_f32 v128, v128, v116, v118")
    e.i("v_max_f32 v128, v128, v129")
    for w in range(8):
        e.i("v_sub_f32 v%d, v%d, v128" % (132 + w, 104 + 2 * w))
    for w in range(8):
        e.i("v_mul_f32 v%d, s90, v%d" % (132 + w, 132 + w))
    for w in range(8):
        e.i("v_exp_f32 v%d, v%d" % (132 + w, 132 + w))
    e.i("v_mul_f32 v130, v132, v120")
    e.i("v_mul_f32 v129, v132, v105")
    for w in range(1, 8):
        e.i("v_fmac_f32 v130, v%d, v%d" % (132 + w, 120 + w))
        e.i("v_fmac_f32 v129, v%d, v%d" % (132 + w, 105 + 2 * w))
    e.i("s_lshl_b32 s83, s%d, 10" % S_S)
    e.i("s_add_u32 s83, s83, s86")
    e.i("buffer_store_dword v130, v7, %s, s83 offen sc0 sc1" % S4(S_WS))
    e.i("s_cmp_lg_u32 s%d, 0" % S_W)
    e.i("s_cbranch_scc1 L_pub")
    e.i("s_mov_b64 exec, 1")
    e.i("buffer_store_dwordx2 v[128:129], v7, %s, s83 offen offset:768 sc0 sc1" % S4(S_WS))
    e.i("s_mov_b64 exec, -1")
    e.label("L_pub")
    e.i("s_nop 3")
    e.wait_vm_all()
    e.i("s_barrier")
    e.i("s_cmp_lg_u32 s%d, 0" % S_W)
    e.i("s_cbranch_scc1 L_polled")
    e.i("v_mov_b32 v104, 1")
    e.i("v_mov_b32 v105, 0")
    e.i("s_mov_b64 exec, 1")
    e.i("buffer_store_dword v104, v105, %s, s3 offen sc0 sc1" % S4(S_WS))
    e.i("s_mov_b64 exec, -1")
    stamp(e, 5)
    e.i("s_mov_b32 s83, 0")
    e.label("L_poll1")
    e.i("s_nop 3")
    e.i("v_readfirstlane_b32 s90, v102")
    e.i("s_cmp_ge_u32 s90, 8")
    e.i("s_cbranch_scc1 L_poll2")
    e.i("s_add_u32 s83, s83, 1")
    e.i("s_cmp_ge_u32 s83, 0x400000")
    e.i("s_cbranch_scc1 L_poll2")
    e.i("s_sleep 2")
    e.i("buffer_load_dword v102, v101, %s, 0 offen sc0 sc1" % S4(S_DBG))
    e.i("s_waitcnt vmcnt(0)")
    e.i("s_branch L_poll1")
    e.label("L_poll2")
    e.i("s_nop 3")
    e.i("s_andn2_b32 s90, s3, 0xff")
    e.i("v_and_b32 v105, 7, v1")
    e.i("v_lshlrev_b32 v105, 2, v105")
    e.label("L_poll3")
    e.i("s_nop 3")
    e.i("buffer_load_dword v104, v105, %s, s90 offen sc0 sc1" % S4(S_WS))
    e.i("s_waitcnt vmcnt(0)")
    e.i("v_cmp_ne_u32 vcc, 1, v104")
    e.i("s_cmp_eq_u64 vcc, 0")
    e.i("s_cbranch_scc1 L_polled")
    e.i("s_add_u32 s83, s83, 1")
    e.i("s_cmp_ge_u32 s83, 0x400000")
    e.i("s_cbranch_scc1 L_polled")
    e.i("s_sleep 1")
    e.i("s_branch L_poll3")
    e.label("L_polled")
    e.i("s_nop 3")
    e.i("s_barrier")
    stamp(e, 6)
    e.i("s_cmp_ge_u32 s%d, 3" % S_W)
    e.i("s_cbranch_scc1 L_rec_h")
    e.i("v_mov_b32 v8, 768")
    for s in range(8):
        e.i("s_add_u32 s87, s86, %d" % (s * 1024))
        e.i("buffer_load_dwordx2 %s, v8, %s, s87 offen sc0 sc1" % (R(104 + 2 * s, 2), S4(S_WS)))
        e.i("buffer_load_dword v%d, v7, %s, s87 offen sc0 sc1" % (120 + s, S4(S_WS)))
    e.i("s_waitcnt vmcnt(0)")
    e.i("v_max3_f32 v30, v104, v106, v108")
    e.i("v_max3_f32 v31, v110, v112, v114")
    e.i("v_max3_f32 v30, v30, v116, v118")
    e.i("v_max_f32 v30, v30, v31")
    e.i("s_mov_b32 s90, %s" % f32(LOG2E))
    for s in range(8):
        e.i("v_sub_f32 v%d, v%d, v30" % (32 + s, 104 + 2 * s))
    for s in range(8):
        e.i("v_mul_f32 v%d, s90, v%d" % (32 + s, 32 + s))
    for s in range(8):
        e.i("v_exp_f32 v%d, v%d" % (32 + s, 32 + s))
    e.i("v_mul_f32 v40, v32, v120")
    e.i("v_mul_f32 v41, v32, v105")
    for s in range(1, 8):
        e.i("v_fmac_f32 v40, v%d, v%d" % (32 + s, 120 + s))
        e.i("v_fmac_f32 v41, v%d, v%d" % (32 + s, 105 + 2 * s))
    e.i("v_rcp_f32 v42, v41")
    e.i("v_mul_f32 v43, v40, v42")
    e.i("v_fma_f32 v44, -v43, v41, v40")
    e.i("v_fmac_f32 v43, v44, v42")
    bf16_round(e, 43, 44)
    e.i("ds_write_b32 v7, v43 offset:%d" % T_O)
    e.i("s_branch L_rec_join")
    e.label("L_rec_h")
    e.i("s_nop 3")
    e.i("s_cmp_lg_u32 s%d, 3" % S_W)
    e.i("s_cbranch_scc1 L_rec_join")
    e.i("v_lshlrev_b32 v4, 2, v1")
    e.i("s_lshl_b32 s87, s%d, 12" % S_H)
    e.i("s_add_u32 s87, s87, %d" % REC2_OFF)
    for s in range(8):
        e.i("buffer_load_dword v%d, v4, %s, s87 offen offset:%d sc0 sc1" % (104 + s, S4(S_WS), s * 512))
        e.i("buffer_load_dword v%d, v4, %s, s87 offen offset:%d sc0 sc1" % (112 + s, S4(S_WS), s * 512 + 192))
    e.i("s_waitcnt vmcnt(0)")
    for o in (104, 112):
        for a, b in ((0, 1), (2, 3), (4, 5), (6, 7), (0, 2), (4, 6), (0, 4)):
            e.i("v_add_f32 v%d, v%d, v%d" % (o + a, o + a, o + b))
    bf16_round_pair(e, 104, 112, 105)
    e.i("v_mul_f32 v104, v104, v112")
    bf16_round(e, 104, 105)
    e.i("s_mov_b32 exec_hi, 0xffff")
    e.i("ds_write_b32 v4, v104 offset:%d" % (T_O + 768))
    e.i("s_mov_b64 exec, -1")
    e.label("L_rec_join")
    e.i("s_nop 3")
    e.i("s_waitcnt lgkmcnt(0)")
    e.i("s_barrier")
    stamp(e, 7)
    e.i("s_mul_i32 s90, s%d, 96" % S_W)
    e.i("v_lshlrev_b32 v8, 2, v60")
    e.i("v_add_u32 v9, s90, v8")
    for i in range(4):
        e.i("ds_read_b32 v%d, v9 offset:%d" % (50 + i, T_O + 24 * i))
    e.i("s_mul_i32 s90, s%d, 24" % S_W)
    e.i("v_add_u32 v9, s90, v8")
    e.i("ds_read_b32 v54, v9 offset:%d" % (T_O + 768))
    e.i("s_waitcnt lgkmcnt(0)")
    A, B = 120, 128
    for i in range(4):
        for k in range(4):
            e.i("v_lshlrev_b32 v44, 16, v%d" % (64 + 4 * i + k))
            e.i("v_and_b32 v45, s%d, v%d" % (S_MASK, 64 + 4 * i + k))
            op = "v_mul_f32" if i == 0 else "v_fmac_f32"
            e.i("%s v%d, v%d, v44" % (op, A + 2 * k, 50 + i))
            e.i("%s v%d, v%d, v45" % (op, A + 2 * k + 1, 50 + i))
    for k in range(4):
        e.i("v_lshlrev_b32 v44, 16, v%d" % (80 + k))
        e.i("v_and_b32 v45, s%d, v%d" % (S_MASK, 80 + k))
        e.i("v_mul_f32 v%d, v54, v44" % (B + 2 * k))
        e.i("v_mul_f32 v%d, v54, v45" % (B + 2 * k + 1))
    e.i("s_mul_i32 s90, s%d, %d" % (S_W, 6 * 320))
    e.i("v_mul_u32_u24 v8, 320, v60")
    e.i("v_lshlrev_b32 v9, 5, v61")
    e.i("v_add3_u32 v8, v8, v9, s90")
    e.i("s_mov_b32 exec_hi, 0x0fffffff")
    e.i("ds_write_b128 v8, %s offset:%d" % (R(A, 4), T_PA))
    e.i("ds_write_b128 v8, %s offset:%d" % (R(A + 4, 4), T_PA + 16))
    e.i("ds_write_b128 v8, %s offset:%d" % (R(B, 4), T_PB))
    e.i("ds_write_b128 v8, %s offset:%d" % (R(B + 4, 4), T_PB + 16))
    e.i("s_mov_b64 exec, -1")
    e.i("s_waitcnt lgkmcnt(0)")
    e.i("s_barrier")
    stamp(e, 8)
    e.i("s_cmp_ge_u32 s%d, 3" % S_W)
    e.i("s_cbranch_scc1 L_tail_sync")
    e.i("v_cmp_le_u32 vcc, 80, v0")
    e.i("v_mov_b32 v8, 0")
    e.i("v_mov_b32 v9, %d" % (15360 - 320))
    e.i("v_cndmask_b32 v8, v8, v9, vcc")
    e.i("v_add_u32 v8, v8, v7")
    for sl in range(48):
        e.i("ds_read_b32 v%d, v8 offset:%d" % (140 + sl, T_PA + sl * 320))
    e.i("s_waitcnt lgkmcnt(0)")
    for st in (24, 12, 6, 3):
        for k in range(st):
            e.i("v_add_f32 v%d, v%d, v%d" % (140 + k, 140 + k, 140 + k + st))
    e.i("v_add_f32 v140, v140, v141")
    e.i("v_add_f32 v140, v140, v142")
    e.i("s_lshl_b32 s90, s%d, 5" % S_S)
    e.i("s_add_u32 s90, s90, s%d" % S_H)
    e.i("s_mul_i32 s90, s90, 640")
    e.i("s_add_u32 s90, s90, %d" % PART_OFF)
    e.i("v_cmp_gt_u32 vcc, 160, v0")
    e.i("s_and_saveexec_b64 s[30:31], vcc")
    e.i("buffer_store_dword v140, v7, %s, s90 offen sc0 sc1" % S4(S_WS))
    e.i("s_mov_b64 exec, -1")
    e.label("L_tail_sync")
    e.i("s_nop 3")
    e.i("s_waitcnt vmcnt(0)")
    e.i("s_barrier")
    e.i("s_cmp_lg_u32 s%d, 0" % S_W)
    e.i("s_cbranch_scc1 L_tail_w")
    e.i("s_mov_b64 exec, 1")
    e.i("v_mov_b32 v8, 1")
    e.i("s_lshl_b32 s90, s%d, 2" % S_S)
    e.i("s_add_u32 s90, s90, 128")
    e.i("v_mov_b32 v9, s90")
    e.i("buffer_atomic_add v8, v9, %s, 0 offen sc0 sc1" % S4(S_DBG))
    e.i("s_waitcnt vmcnt(0)")
    e.i("v_mov_b32 v9, %d" % T_FLAG)
    e.i("ds_write_b32 v9, v8")
    e.i("s_mov_b64 exec, -1")
    e.label("L_tail_w")
    e.i("s_nop 3")
    e.i("s_waitcnt lgkmcnt(0)")
    e.i("s_barrier")
    e.i("v_mov_b32 v9, %d" % T_FLAG)
    e.i("ds_read_b32 v8, v9")
    e.i("s_waitcnt lgkmcnt(0)")
    stamp(e, 9)
    stamp_store(e, 17, 0)
    e.i("v_readfirstlane_b32 s90, v8")
    e.i("s_cmp_lg_u32 s90, 31")
    e.i("s_cbranch_scc1 L_exit")
    e.i("s_cmp_ge_u32 s%d, 3" % S_W)
    e.i("s_cbranch_scc1 L_tail_fin2")
    e.i("s_mul_i32 s90, s%d, %d" % (S_S, 32 * 640))
    e.i("s_add_u32 s90, s90, %d" % PART_OFF)
    for hh in range(32):
        e.i("buffer_load_dword v%d, v7, %s, s90 offen sc0 sc1" % (140 + hh, S4(S_WS)))
        if hh < 31:
            e.i("s_add_u32 s90, s90, 640")
    e.i("s_waitcnt vmcnt(0)")
    for st in (16, 8, 4, 2, 1):
        for k in range(st):
            e.i("v_add_f32 v%d, v%d, v%d" % (140 + k, 140 + k, 140 + k + st))
    bf16_round(e, 140, 141)
    e.i("ds_write_b32 v7, v140 offset:%d" % T_FIN)
    e.label("L_tail_fin2")
    e.i("s_nop 3")
    e.i("s_waitcnt lgkmcnt(0)")
    e.i("s_barrier")
    e.i("s_cmp_ge_u32 s%d, 2" % S_W)
    e.i("s_cbranch_scc1 L_exit")
    e.i("ds_read_b32 v8, v7 offset:%d" % T_FIN)
    e.i("ds_read_b32 v9, v7 offset:%d" % (T_FIN + 320))
    e.i("s_waitcnt lgkmcnt(0)")
    e.i("v_mul_f32 v8, s91, v8")
    e.i("v_mov_b32 v10, s91")
    e.i("v_sub_f32 v10, 1.0, v10")
    bf16_round(e, 10, 11)
    e.i("v_mul_f32 v9, v10, v9")
    bf16_round_pair(e, 8, 9, 11)
    e.i("v_add_f32 v8, v8, v9")
    e.i("v_cvt_pk_bf16_f32 v8, v8, v8")
    e.i("s_mul_i32 s90, s%d, 160" % S_S)
    e.i("v_lshlrev_b32 v9, 1, v0")
    e.i("v_cmp_gt_u32 vcc, 80, v0")
    e.i("s_and_saveexec_b64 s[30:31], vcc")
    e.i("buffer_store_short v8, v9, %s, s90 offen" % S4(S_OUT))
    e.i("s_mov_b64 exec, -1")
    stamp(e, 10)
    stamp_store(e, 17, 0)
    e.label("L_exit")
    e.i("s_endpgm")


def descriptor(name, vgpr, sgpr=102):
    acc = (vgpr + 3) // 4 * 4
    return """.p2align 6
.amdhsa_kernel %s
  .amdhsa_next_free_vgpr %d
  .amdhsa_next_free_sgpr %d
  .amdhsa_accum_offset %d
  .amdhsa_group_segment_fixed_size 0
  .amdhsa_kernarg_size 104
  .amdhsa_user_sgpr_count 2
  .amdhsa_user_sgpr_kernarg_segment_ptr 1
  .amdhsa_system_sgpr_workgroup_id_x 1
.end_amdhsa_kernel
""" % (name, vgpr, sgpr, acc)


KPRE = 5
KLATE = False
QBAR = False


def main():
    global STAMPS, KPRE, KLATE, NT, QBAR
    outf = OUT
    for a in sys.argv[1:]:
        if a == "stamps":
            STAMPS = True
        elif a.startswith("out="):
            outf = a[4:]
        elif a.startswith("kpre="):
            KPRE = int(a[5:])
        elif a == "klate":
            KLATE = True
        elif a == "qbar":
            QBAR = True
        elif a == "nont":
            NT = ""
    ref = open(OUT + ".ref").read().splitlines()
    head = []
    for ln in ref:
        if ln.startswith(";") and "@launch" not in ln:
            head.append(ln)
        elif ln.startswith(";"):
            continue
        else:
            break
    e1 = Emit()
    fused_kernel(e1)
    txt = "\n".join(head) + "\n"
    txt += "; @launch grid=(256,1,1) block=(512,1,1) lds=%d\n" % (FUSED_LDS + 192)
    txt += '.amdgcn_target "amdgcn-amd-amdhsa--gfx950"\n.text\n'
    txt += e1.text()
    txt += '.section .rodata,"a"\n'
    txt += descriptor(KNAME, 256)
    open(outf, "w").write(txt)


if __name__ == "__main__":
    main()
```

```python
import struct
import sys

sys.path.insert(0, "gen")
from emit import Emit

OUT = "gated_mix__gqa_block_cached__glu_gated_bilinear__decode.s"


def f32(x):
    return "0x%08x" % struct.unpack("<I", struct.pack("<f", x))[0]


LOG2E = 1.4426950408889634
SCALE = 192 ** -0.5

KV_BYTES = 100663296
WQ_BYTES = 640 * 6144 * 2
WO_BYTES = 6144 * 640 * 2
WG_BYTES = 640 * 1536 * 2
WD_BYTES = 1536 * 640 * 2
WS_BYTES = 402653184
PART_OFF = 0x100000

S_K, S_V, S_WQ, S_X, S_WG, S_WU, S_WS, S_WO, S_WD, S_GW, S_OUT, S_DBG = (
    32, 36, 40, 44, 48, 52, 56, 60, 64, 68, 72, 76)
S_H, S_S, S_W = 80, 81, 82
S_MASK = 89

NT = " nt"
STAMPS = False
STAMP_OFF = 0x800000


STAMP_REGS = [92, 94, 96, 98, 100, 4, 6, 8, 10, 12, 14, 16, 18, 20, 22, 24, 26]


def stamp(e, n):
    if STAMPS:
        e.i("s_memrealtime s[%d:%d]" % (STAMP_REGS[n], STAMP_REGS[n] + 1))


def stamp_store(e, nst, kidx, va=250, vb=251):
    if not STAMPS:
        return
    e.i("s_waitcnt lgkmcnt(0)")
    e.i("s_lshl_b32 s90, s2, 3")
    e.i("s_add_u32 s90, s90, s%d" % S_W)
    e.i("s_lshl_b32 s90, s90, 7")
    e.i("s_add_u32 s90, s90, %d" % (STAMP_OFF + kidx * 0x100000))
    e.i("s_mov_b64 exec, 1")
    e.i("v_mov_b32 v%d, 0" % va)
    for n in range(nst):
        e.i("v_mov_b32 v%d, s%d" % (vb, STAMP_REGS[n]))
        e.i("buffer_store_dword v%d, v%d, %s, s90 offen offset:%d" % (vb, va, S4(S_WS), 4 * n))
    e.i("s_mov_b64 exec, -1")


def srd(e, base, ptr, nbytes):
    e.i("s_mov_b32 s%d, s%d" % (base, ptr))
    e.i("s_and_b32 s%d, s%d, 0xffff" % (base + 1, ptr + 1))
    e.i("s_mov_b32 s%d, %d" % (base + 2, nbytes))
    e.i("s_mov_b32 s%d, 0x00020000" % (base + 3))


def R(a, n):
    return "v[%d:%d]" % (a, a + n - 1)


def S4(a):
    return "s[%d:%d]" % (a, a + 3)


def common_prologue(e, exit_label):
    e.i("s_cmp_ge_u32 s2, 256")
    e.i("s_cbranch_scc1 %s" % exit_label)
    e.i("s_load_dwordx16 s[4:19], s[0:1], 0")
    e.i("s_load_dwordx8 s[20:27], s[0:1], 64")
    e.i("s_load_dwordx2 s[28:29], s[0:1], 96")
    e.i("v_and_b32 v1, 63, v0")
    e.i("v_lshrrev_b32 v4, 6, v0")
    e.i("v_readfirstlane_b32 s%d, v4" % S_W)
    e.i("s_and_b32 s%d, s2, 7" % S_H)
    e.i("s_lshl_b32 s%d, s%d, 2" % (S_H, S_H))
    e.i("s_lshr_b32 s%d, s2, 3" % S_S)
    e.i("s_and_b32 s83, s%d, 3" % S_S)
    e.i("s_add_u32 s%d, s%d, s83" % (S_H, S_H))
    e.i("s_lshr_b32 s%d, s2, 5" % S_S)
    e.i("s_mov_b32 s%d, 0xffff0000" % S_MASK)


def dpp_full_reduce(e, regs):
    for mod in ("row_shr:1 row_mask:0xf bank_mask:0xf bound_ctrl:0",
                "row_shr:2 row_mask:0xf bank_mask:0xf bound_ctrl:0",
                "row_shr:4 row_mask:0xf bank_mask:0xf bound_ctrl:0",
                "row_shr:8 row_mask:0xf bank_mask:0xf bound_ctrl:0",
                "row_bcast:15 row_mask:0xa bank_mask:0xf",
                "row_bcast:31 row_mask:0xc bank_mask:0xf"):
        for r in regs:
            e.i("v_add_f32_dpp v%d, v%d, v%d %s" % (r, r, r, mod))


def reduce24(e, acc):
    for i in range(12):
        e.i("v_permlane32_swap_b32 v%d, v%d" % (acc + 2 * i, acc + 2 * i + 1))
    for i in range(12):
        e.i("v_add_f32 v%d, v%d, v%d" % (acc + 2 * i, acc + 2 * i, acc + 2 * i + 1))
    for k in range(6):
        e.i("v_permlane16_swap_b32 v%d, v%d" % (acc + 4 * k, acc + 4 * k + 2))
    for k in range(6):
        e.i("v_add_f32 v%d, v%d, v%d" % (acc + 4 * k, acc + 4 * k, acc + 4 * k + 2))
    for k in range(6):
        e.i("v_add_f32_dpp v%d, v%d, v%d row_ror:8 row_mask:0xf bank_mask:0xf" % (acc + 4 * k, acc + 4 * k, acc + 4 * k))


def fma_slot(e, base, acc, coef, temps):
    nt = len(temps)
    for k in range(12):
        t0 = temps[(2 * k) % nt]
        t1 = temps[(2 * k + 1) % nt]
        e.i("v_lshlrev_b32 v%d, 16, v%d" % (t0, base + k))
        e.i("v_and_b32 v%d, s%d, v%d" % (t1, S_MASK, base + k))
        e.i("v_fmac_f32 v%d, v%d, v%d" % (acc + 2 * k, coef, t0))
        e.i("v_fmac_f32 v%d, v%d, v%d" % (acc + 2 * k + 1, coef, t1))


def bf16_round_pair(e, a, b, t):
    e.i("v_cvt_pk_bf16_f32 v%d, v%d, v%d" % (t, a, b))
    e.i("v_lshlrev_b32 v%d, 16, v%d" % (a, t))
    e.i("v_and_b32 v%d, s%d, v%d" % (b, S_MASK, t))


def bf16_round(e, a, t):
    e.i("v_cvt_pk_bf16_f32 v%d, v%d, v%d" % (t, a, a))
    e.i("v_lshlrev_b32 v%d, 16, v%d" % (a, t))


L_RED = 0
L_FFN = 6144
L_QB = 9216
L_ML = 9600
MAIN_LDS = 10240

ACC = 8
QR = 32
SC = 44
SLOT0 = 64


def slot(t):
    return SLOT0 + 12 * t


def kv_loads(e, srdbase, t, tagp):
    e.i("s_add_u32 s88, s87, %d" % (t * 3072))
    for j in range(3):
        e.i("buffer_load_dwordx4 %s, v2, %s, s88 offen offset:%d%s" % (R(slot(t) + 4 * j, 4), S4(srdbase), j * 128, NT),
            tag=(tagp, t, j))


FLAG_OFF = 0x200000
REC2_OFF = 0x80000
QREC_OFF = 0x300000
KNAME = "gated_mix__gqa_block_cached__glu_gated_bilinear__decode_kernel"

T_O = 10240
T_PA = T_O + 1024
T_PB = T_PA + 15360
T_FIN = T_PB + 15360
T_FLAG = T_FIN + 1024
FUSED_LDS = T_FLAG + 64


def fused_kernel(e):
    name = KNAME
    e.raw(".globl %s" % name)
    e.raw(".p2align 8")
    e.raw(".type %s,@function" % name)
    e.raw("%s:" % name)
    common_prologue(e, "L_exit")
    e.i("v_lshrrev_b32 v4, 3, v1")
    e.i("v_and_b32 v5, 7, v1")
    e.i("v_lshlrev_b32 v5, 4, v5")
    e.i("v_mul_u32_u24 v2, 0x180, v4")
    e.i("v_add_u32 v2, v2, v5")
    e.i("v_mul_u32_u24 v3, 12288, v4")
    e.i("v_add_u32 v3, v3, v5")
    e.i("v_mul_u32_u24 v7, 3072, v4")
    e.i("v_add_u32 v7, v7, v5")
    e.i("v_lshlrev_b32 v55, 1, v4")
    for r in list(range(32, 48)) + [54, 60] + [slot(15) + r for r in range(12)]:
        e.i("v_mov_b32 v%d, 0" % r)
    e.i("s_mul_i32 s86, s%d, 80" % S_S)
    e.i("s_mul_i32 s83, s%d, 10" % S_W)
    e.i("s_add_u32 s86, s86, s83")
    e.i("s_lshl_b32 s88, s86, 1")
    e.i("s_mul_i32 s85, s86, 12288")
    e.i("s_mul_i32 s83, s%d, 384" % S_H)
    e.i("s_add_u32 s85, s85, s83")
    e.i("s_add_u32 s84, s85, %d" % (8 * 12288))
    e.i("s_mul_i32 s86, s86, 3072")
    e.i("s_mul_i32 s83, s%d, 96" % S_H)
    e.i("s_add_u32 s86, s86, s83")
    e.i("s_add_u32 s90, s86, %d" % (8 * 3072))
    e.i("s_mul_i32 s87, s%d, %d" % (S_H, 8192 * 384))
    e.i("s_mul_i32 s83, s%d, %d" % (S_S, 1024 * 384))
    e.i("s_add_u32 s87, s87, s83")
    e.i("s_mul_i32 s83, s%d, %d" % (S_W, 128 * 384))
    e.i("s_add_u32 s87, s87, s83")
    e.i("s_lshl_b32 s91, s%d, 8" % S_H)
    e.i("s_lshl_b32 s83, s%d, 2" % S_S)
    e.i("s_add_u32 s91, s91, s83")
    e.i("s_add_u32 s3, s91, %d" % FLAG_OFF)
    e.i("s_waitcnt lgkmcnt(0)")
    stamp(e, 0)
    srd(e, S_X, 4, 1280)
    srd(e, S_WG, 16, WG_BYTES)
    srd(e, S_WU, 18, WG_BYTES)
    srd(e, S_WQ, 10, WQ_BYTES)
    srd(e, S_K, 6, KV_BYTES)
    srd(e, S_WS, 28, WS_BYTES)
    e.i("buffer_load_ushort v53, v55, %s, s88 offen" % S4(S_X), tag="xa")
    for j in range(3):
        e.i("buffer_load_dwordx4 %s, v3, %s, s85 offen offset:%d" % (R(slot(14) + 4 * j, 4), S4(S_WQ), j * 128), tag=("wq", 0, j))
    e.i("s_mov_b32 exec_lo, 0x3f3f3f3f")
    e.i("s_mov_b32 exec_hi, 0x3f3f3f3f")
    e.i("buffer_load_dwordx4 v[32:35], v7, %s, s86 offen" % S4(S_WG), tag="ga")
    e.i("buffer_load_dwordx4 v[40:43], v7, %s, s86 offen" % S4(S_WU), tag="ua")
    e.i("s_mov_b64 exec, 0x3f3f")
    e.i("buffer_load_dwordx4 v[36:39], v7, %s, s90 offen" % S4(S_WG), tag="gb")
    e.i("buffer_load_dwordx4 v[44:47], v7, %s, s90 offen" % S4(S_WU), tag="ub")
    e.i("s_mov_b64 exec, 0xffff")
    e.i("buffer_load_ushort v54, v55, %s, s88 offen offset:16" % S4(S_X), tag="xb")
    for j in range(3):
        e.i("buffer_load_dwordx4 %s, v3, %s, s84 offen offset:%d" % (R(slot(15) + 4 * j, 4), S4(S_WQ), j * 128), tag=("wq", 1, j))
    e.i("s_mov_b64 exec, -1")
    srd(e, S_V, 8, KV_BYTES)
    srd(e, S_GW, 22, 1280)
    srd(e, S_WO, 12, WO_BYTES)
    srd(e, S_WD, 20, WD_BYTES)
    srd(e, S_OUT, 24, 1280)
    srd(e, S_DBG, 26, 256)
    e.i("s_cmp_eq_u32 s%d, 0" % S_W)
    e.i("s_cbranch_scc1 L_nokpre")
    save = (e.vm_issued, e.vm_done)
    for t in range(KPRE):
        kv_loads(e, S_K, t, "k")
    e.label("L_nokpre")
    e.i("s_nop 3")
    FA = [slot(13) + r for r in range(12)] + [56, 57, 58, 59]
    e.i("s_cmp_eq_u32 s%d, 0" % S_W)
    e.i("s_cbranch_scc0 L_w17")
    e.i("s_waitcnt vmcnt(0)")
    e.label("L_w17")
    e.i("s_nop 3")
    e.wait_vm(("wq", 1, 2))
    stamp(e, 11)
    e.i("v_lshlrev_b32 v53, 16, v53")
    e.i("v_lshlrev_b32 v54, 16, v54")
    for m, (ra, rb) in enumerate(((32, 36), (40, 44))):
        for k in range(4):
            e.i("v_lshlrev_b32 v60, 16, v%d" % (ra + k))
            e.i("v_and_b32 v61, s%d, v%d" % (S_MASK, ra + k))
            e.i("v_lshlrev_b32 v62, 16, v%d" % (rb + k))
            e.i("v_and_b32 v63, s%d, v%d" % (S_MASK, rb + k))
            e.i("v_mul_f32 v%d, v53, v60" % FA[m * 8 + 2 * k])
            e.i("v_mul_f32 v%d, v53, v61" % FA[m * 8 + 2 * k + 1])
            e.i("v_fmac_f32 v%d, v54, v62" % FA[m * 8 + 2 * k])
            e.i("v_fmac_f32 v%d, v54, v63" % FA[m * 8 + 2 * k + 1])
    for k in range(12):
        e.i("v_lshlrev_b32 v60, 16, v%d" % (slot(14) + k))
        e.i("v_and_b32 v61, s%d, v%d" % (S_MASK, slot(14) + k))
        e.i("v_lshlrev_b32 v62, 16, v%d" % (slot(15) + k))
        e.i("v_and_b32 v63, s%d, v%d" % (S_MASK, slot(15) + k))
        e.i("v_mul_f32 v%d, v53, v60" % (ACC + 2 * k))
        e.i("v_mul_f32 v%d, v53, v61" % (ACC + 2 * k + 1))
        e.i("v_fmac_f32 v%d, v54, v62" % (ACC + 2 * k))
        e.i("v_fmac_f32 v%d, v54, v63" % (ACC + 2 * k + 1))
    for i in range(8):
        e.i("v_permlane32_swap_b32 v%d, v%d" % (FA[2 * i], FA[2 * i + 1]))
    for i in range(8):
        e.i("v_add_f32 v%d, v%d, v%d" % (FA[2 * i], FA[2 * i], FA[2 * i + 1]))
    for k in range(4):
        e.i("v_permlane16_swap_b32 v%d, v%d" % (FA[4 * k], FA[4 * k + 2]))
    for k in range(4):
        e.i("v_add_f32 v%d, v%d, v%d" % (FA[4 * k], FA[4 * k], FA[4 * k + 2]))
    for k in range(4):
        e.i("v_add_f32_dpp v%d, v%d, v%d row_ror:8 row_mask:0xf bank_mask:0xf" % (FA[4 * k], FA[4 * k], FA[4 * k]))
    reduce24(e, ACC)
    e.i("v_and_b32 v4, 7, v1")
    e.i("v_lshlrev_b32 v4, 5, v4")
    e.i("v_bfe_u32 v5, v1, 4, 1")
    e.i("v_lshlrev_b32 v5, 3, v5")
    e.i("v_add_u32 v4, v4, v5")
    e.i("v_bfe_u32 v5, v1, 5, 1")
    e.i("v_lshlrev_b32 v5, 2, v5")
    e.i("v_add_u32 v7, v4, v5")
    e.i("s_mul_i32 s90, s%d, 384" % S_W)
    e.i("v_add_u32 v60, s90, v7")
    e.i("s_mul_i32 s90, s%d, 768" % S_W)
    e.i("v_add_u32 v7, s90, v7")
    for k in range(6):
        e.i("ds_write_b32 v7, v%d offset:%d" % (ACC + 4 * k, (k >> 1) * 256 + (k & 1) * 16))
    e.i("s_mov_b32 exec_lo, 0x3f3f3f3f")
    e.i("s_mov_b32 exec_hi, 0x3f3f3f3f")
    for k in range(4):
        e.i("ds_write_b32 v60, v%d offset:%d" % (FA[4 * k], L_FFN + (k >> 1) * 192 + (k & 1) * 16))
    e.i("s_mov_b64 exec, -1")
    e.i("s_waitcnt lgkmcnt(0)")
    e.i("s_barrier")
    e.i("s_cmp_eq_u32 s%d, 0" % S_W)
    e.i("s_cbranch_scc1 L_sync0")
    done_b1 = e.vm_done
    for t in range(KPRE, 16):
        if t >= KPACE:
            e.wait_vm(("k", t - KPACE, 2))
        kv_loads(e, S_K, t, "k")
    e.i("s_branch L_q_join")
    e.label("L_sync0")
    e.i("s_nop 3")
    after = (e.vm_issued, done_b1, dict(e.tagpos))
    e.i("v_lshlrev_b32 v4, 2, v1")
    for w in range(8):
        for i in range(3):
            e.i("ds_read_b32 v%d, v4 offset:%d" % (64 + 8 * i + w, w * 768 + i * 256))
        e.i("ds_read_b32 v%d, v4 offset:%d" % (88 + w, L_FFN + w * 384))
        e.i("ds_read_b32 v%d, v4 offset:%d" % (96 + w, L_FFN + w * 384 + 192))
    e.i("s_waitcnt lgkmcnt(0)")
    for o in (64, 72, 80, 88, 96):
        for a, b in ((0, 1), (2, 3), (4, 5), (6, 7), (0, 2), (4, 6), (0, 4)):
            e.i("v_add_f32 v%d, v%d, v%d" % (o + a, o + a, o + b))
    e.i("s_lshl_b32 s90, s%d, 3" % S_H)
    e.i("s_add_u32 s90, s90, s%d" % S_S)
    e.i("s_lshl_b32 s83, s90, 10")
    e.i("s_add_u32 s83, s83, %d" % QREC_OFF)
    for i in range(3):
        e.i("buffer_store_dword v%d, v4, %s, s83 offen offset:%d sc0 sc1" % (64 + 8 * i, S4(S_WS), i * 256))
    e.i("s_lshl_b32 s90, s90, 9")
    e.i("s_add_u32 s90, s90, %d" % REC2_OFF)
    e.i("s_mov_b32 exec_hi, 0xffff")
    e.i("buffer_store_dword v88, v4, %s, s90 offen sc0 sc1" % S4(S_WS))
    e.i("buffer_store_dword v96, v4, %s, s90 offen offset:192 sc0 sc1" % S4(S_WS))
    e.i("s_mov_b64 exec, 1")
    e.i("v_mov_b32 v60, 0")
    e.i("buffer_store_dword v60, v60, %s, s3 offen sc0 sc1" % S4(S_WS))
    e.i("s_waitcnt vmcnt(0)")
    e.i("v_mov_b32 v56, 1")
    e.i("s_lshl_b32 s90, s%d, 2" % S_H)
    e.i("v_mov_b32 v57, s90")
    e.i("buffer_atomic_add v56, v57, %s, 0 offen sc1" % S4(S_DBG))
    e.i("s_mov_b64 exec, -1")
    e.i("v_mov_b32 v57, s90")
    stamp(e, 12)
    e.i("s_mov_b32 s83, 0")
    e.i("s_sleep %d" % QSLEEP0)
    e.label("L_qpoll")
    e.i("s_nop 3")
    e.i("buffer_load_dword v56, v57, %s, 0 offen sc0 sc1" % S4(S_DBG))
    e.i("s_waitcnt vmcnt(0)")
    e.i("v_readfirstlane_b32 s90, v56")
    e.i("s_cmp_ge_u32 s90, 8")
    e.i("s_cbranch_scc1 L_qready")
    e.i("s_add_u32 s83, s83, 1")
    e.i("s_cmp_ge_u32 s83, 0x400000")
    e.i("s_cbranch_scc1 L_qready")
    e.i("s_sleep %d" % QSLEEP1)
    e.i("s_branch L_qpoll")
    e.label("L_qready")
    e.i("s_nop 3")
    stamp(e, 13)
    e.i("s_lshl_b32 s83, s%d, 13" % S_H)
    e.i("s_add_u32 s83, s83, %d" % QREC_OFF)
    for sp in range(8):
        for i in range(3):
            e.i("buffer_load_dword v%d, v4, %s, s83 offen offset:%d sc0 sc1" % (64 + 8 * i + sp, S4(S_WS), i * 256))
        if sp < 7:
            e.i("s_add_u32 s83, s83, 1024")
    e.i("s_waitcnt vmcnt(0)")
    for o in (64, 72, 80):
        for a, b in ((0, 1), (2, 3), (4, 5), (6, 7), (0, 2), (4, 6), (0, 4)):
            e.i("v_add_f32 v%d, v%d, v%d" % (o + a, o + a, o + b))
    e.i("v_lshlrev_b32 v4, 1, v1")
    for i in range(3):
        e.i("v_cvt_pk_bf16_f32 v%d, v%d, v%d" % (64 + 8 * i, 64 + 8 * i, 64 + 8 * i))
    for i in range(3):
        e.i("ds_write_b16 v4, v%d offset:%d" % (64 + 8 * i, L_QB + i * 128))
    e.i("s_waitcnt lgkmcnt(0)")
    stamp(e, 14)
    for t in range(16):
        kv_loads(e, S_K, t, "kk")
    e.vm_issued, e.vm_done, e.tagpos = after
    e.label("L_q_join")
    e.i("s_nop 3")
    e.i("s_barrier")
    e.i("v_and_b32 v4, 7, v1")
    e.i("v_lshlrev_b32 v4, 4, v4")
    for j in range(3):
        e.i("ds_read_b128 %s, v4 offset:%d" % (R(QR + 4 * j, 4), L_QB + j * 128))
    e.i("s_waitcnt lgkmcnt(0)")
    stamp(e, 1)
    chains = ((4, 5, 6), (60, 61, 62))
    for t in range(16):
        c = chains[t & 1]
        for j in range(3):
            e.i("v_mov_b32 v%d, 0" % c[j])
        for j in range(3):
            e.wait_vm(("k", t, j))
            for r in range(4):
                e.i("v_dot2c_f32_bf16 v%d, v%d, v%d" % (c[j], slot(t) + 4 * j + r, QR + 4 * j + r))
        kv_loads(e, S_V, t, "v")
        if t:
            p = chains[(t - 1) & 1]
            e.i("v_add_f32 v%d, v%d, v%d" % (SC + t - 1, p[0], p[1]))
            e.i("v_add_f32 v%d, v%d, v%d" % (SC + t - 1, SC + t - 1, p[2]))
    stamp(e, 2)
    p = chains[1]
    e.i("v_add_f32 v%d, v%d, v%d" % (SC + 15, p[0], p[1]))
    e.i("v_add_f32 v%d, v%d, v%d" % (SC + 15, SC + 15, p[2]))
    for mod in ("quad_perm:[1,0,3,2]", "quad_perm:[2,3,0,1]", "row_half_mirror"):
        for t in range(16):
            e.i("v_add_f32_dpp v%d, v%d, v%d %s row_mask:0xf bank_mask:0xf" % (SC + t, SC + t, SC + t, mod))
    e.i("s_mov_b32 s90, %s" % f32(SCALE))
    for t in range(0, 16, 2):
        bf16_round_pair(e, SC + t, SC + t + 1, 32 + (t >> 1))
    for t in range(16):
        e.i("v_mul_f32 v%d, s90, v%d" % (SC + t, SC + t))
    for t in range(0, 16, 2):
        bf16_round_pair(e, SC + t, SC + t + 1, 32 + (t >> 1))
    e.i("v_max3_f32 v32, v%d, v%d, v%d" % (SC, SC + 1, SC + 2))
    e.i("v_max3_f32 v33, v%d, v%d, v%d" % (SC + 3, SC + 4, SC + 5))
    e.i("v_max3_f32 v34, v%d, v%d, v%d" % (SC + 6, SC + 7, SC + 8))
    e.i("v_max3_f32 v35, v%d, v%d, v%d" % (SC + 9, SC + 10, SC + 11))
    e.i("v_max3_f32 v36, v%d, v%d, v%d" % (SC + 12, SC + 13, SC + 14))
    e.i("v_max3_f32 v32, v32, v33, v%d" % (SC + 15))
    e.i("v_max3_f32 v34, v34, v35, v36")
    e.i("v_max_f32 v32, v32, v34")
    e.i("v_max_f32_dpp v32, v32, v32 row_ror:8 row_mask:0xf bank_mask:0xf")
    e.i("v_mov_b32 v33, v32")
    e.i("v_permlane16_swap_b32 v32, v33")
    e.i("v_max_f32 v32, v32, v33")
    e.i("v_mov_b32 v33, v32")
    e.i("v_permlane32_swap_b32 v32, v33")
    e.i("v_max_f32 v6, v32, v33")
    e.i("s_mov_b32 s90, %s" % f32(LOG2E))
    e.i("v_mul_f32 v33, s90, v6")
    for t in range(16):
        e.i("v_fma_f32 v%d, v%d, s90, -v33" % (SC + t, SC + t))
    for t in range(16):
        e.i("v_exp_f32 v%d, v%d" % (SC + t, SC + t))
    e.i("v_add_f32 v32, v%d, v%d" % (SC, SC + 1))
    e.i("v_add_f32 v33, v%d, v%d" % (SC + 2, SC + 3))
    for t in range(4, 16, 2):
        e.i("v_add_f32 v32, v32, v%d" % (SC + t))
        e.i("v_add_f32 v33, v33, v%d" % (SC + t + 1))
    e.i("v_add_f32 v5, v32, v33")
    for r in range(24):
        e.i("v_mov_b32 v%d, 0" % (ACC + r))
    e.i("v_mul_u32_u24 v60, 205, v1")
    e.i("v_lshrrev_b32 v60, 11, v60")
    e.i("v_mul_u32_u24 v61, 10, v60")
    e.i("v_sub_u32 v61, v1, v61")
    e.i("v_mul_u32_u24 v62, 1280, v60")
    e.i("v_lshlrev_b32 v63, 4, v61")
    e.i("v_add_u32 v62, v62, v63")
    e.i("v_mul_u32_u24 v3, 20, v1")
    e.i("s_mul_i32 s84, s%d, 192" % S_H)
    e.i("s_mul_i32 s83, s%d, 24" % S_W)
    e.i("s_add_u32 s84, s84, s83")
    e.i("s_mul_i32 s84, s84, 1280")
    e.i("s_mul_i32 s83, s%d, 160" % S_S)
    e.i("s_add_u32 s84, s84, s83")
    e.i("s_mul_i32 s85, s%d, 48" % S_H)
    e.i("s_mul_i32 s86, s%d, 6" % S_W)
    e.i("s_add_u32 s85, s85, s86")
    e.i("s_mul_i32 s85, s85, 1280")
    e.i("s_add_u32 s85, s85, s83")
    vt = list(range(32, 40))
    for t in range(16):
        e.wait_vm(("v", t, 2))
        fma_slot(e, slot(t), ACC, SC + t, vt)
        if t == 1:
            e.i("s_mov_b32 exec_hi, 0x0fffffff")
            for i in range(4):
                e.i("buffer_load_dwordx4 %s, v62, %s, s84 offen" % (R(64 + 4 * i, 4), S4(S_WO)), tag=("wo", i))
                if i < 3:
                    e.i("s_add_u32 s84, s84, %d" % (6 * 1280))
            e.i("buffer_load_dwordx4 %s, v62, %s, s85 offen" % (R(80, 4), S4(S_WD)), tag="wd")
            e.i("s_mov_b64 exec, -1")
        if t == 3:
            e.i("buffer_load_dwordx4 v[88:91], v3, %s, 0 offen" % S4(S_X), tag="gx0")
            e.i("buffer_load_dword v92, v3, %s, 0 offen offset:16" % S4(S_X), tag="gx1")
            e.i("buffer_load_dwordx4 v[96:99], v3, %s, 0 offen" % S4(S_GW), tag="gw0")
            e.i("buffer_load_dword v100, v3, %s, 0 offen offset:16" % S4(S_GW), tag="gw1")
            e.i("s_lshl_b32 s90, s%d, 2" % S_H)
            e.i("v_mov_b32 v101, s90")
            e.i("buffer_load_dword v102, v101, %s, 0 offen sc0 sc1" % S4(S_DBG), tag="cnt")
    stamp(e, 3)
    e.wait_vm("cnt")
    for k in range(5):
        e.i("v_lshlrev_b32 v44, 16, v%d" % (88 + k))
        e.i("v_and_b32 v45, s%d, v%d" % (S_MASK, 88 + k))
        e.i("v_lshlrev_b32 v46, 16, v%d" % (96 + k))
        e.i("v_and_b32 v47, s%d, v%d" % (S_MASK, 96 + k))
        e.i("v_mul_f32 v44, v44, v46")
        e.i("v_mul_f32 v45, v45, v47")
        bf16_round_pair(e, 44, 45, 46)
        if k == 0:
            e.i("v_add_f32 v48, v44, v45")
        else:
            e.i("v_add_f32 v48, v48, v44")
            e.i("v_add_f32 v48, v48, v45")
    reduce24(e, ACC)
    for k in range(6):
        e.i("ds_write_b32 v7, v%d offset:%d" % (ACC + 4 * k, (k >> 1) * 256 + (k & 1) * 16))
    dpp_full_reduce(e, [5, 48])
    e.i("s_mov_b32 s90, 0x3e000000")
    e.i("v_mul_f32 v5, s90, v5")
    e.i("s_lshl_b32 s90, s%d, 3" % S_W)
    e.i("s_add_u32 s90, s90, %d" % L_ML)
    e.i("v_mov_b32 v63, s90")
    e.i("v_mov_b32 v4, v6")
    e.i("s_mov_b32 exec_lo, 0")
    e.i("s_mov_b32 exec_hi, 0x80000000")
    e.i("ds_write_b64 v63, v[4:5]")
    e.i("s_mov_b64 exec, -1")
    bf16_round(e, 48, 44)
    e.i("s_mov_b32 s90, %s" % f32(LOG2E))
    e.i("v_mul_f32 v48, s90, v48")
    e.i("v_exp_f32 v48, -v48")
    e.i("v_add_f32 v48, 1.0, v48")
    e.i("v_rcp_f32 v48, v48")
    bf16_round(e, 48, 44)
    e.i("v_readlane_b32 s91, v48, 63")
    e.i("v_lshlrev_b32 v7, 2, v0")
    e.i("s_waitcnt lgkmcnt(0)")
    e.i("s_barrier")
    stamp(e, 4)
    e.i("s_lshl_b32 s86, s%d, 13" % S_H)
    e.i("s_cmp_ge_u32 s%d, 3" % S_W)
    e.i("s_cbranch_scc1 L_pub")
    e.i("v_mov_b32 v4, %d" % L_ML)
    for r in range(4):
        e.i("ds_read_b128 %s, v4 offset:%d" % (R(104 + 4 * r, 4), 16 * r))
    for w in range(8):
        e.i("ds_read_b32 v%d, v7 offset:%d" % (120 + w, w * 768))
    e.i("s_waitcnt lgkmcnt(0)")
    e.i("v_max3_f32 v128, v104, v106, v108")
    e.i("v_max3_f32 v129, v110, v112, v114")
    e.i("v_max3_f32 v128, v128, v116, v118")
    e.i("v_max_f32 v128, v128, v129")
    for w in range(8):
        e.i("v_sub_f32 v%d, v%d, v128" % (132 + w, 104 + 2 * w))
    for w in range(8):
        e.i("v_mul_f32 v%d, s90, v%d" % (132 + w, 132 + w))
    for w in range(8):
        e.i("v_exp_f32 v%d, v%d" % (132 + w, 132 + w))
    e.i("v_mul_f32 v130, v132, v120")
    e.i("v_mul_f32 v129, v132, v105")
    for w in range(1, 8):
        e.i("v_fmac_f32 v130, v%d, v%d" % (132 + w, 120 + w))
        e.i("v_fmac_f32 v129, v%d, v%d" % (132 + w, 105 + 2 * w))
    e.i("s_lshl_b32 s83, s%d, 10" % S_S)
    e.i("s_add_u32 s83, s83, s86")
    e.i("buffer_store_dword v130, v7, %s, s83 offen sc0 sc1" % S4(S_WS))
    e.i("s_cmp_lg_u32 s%d, 0" % S_W)
    e.i("s_cbranch_scc1 L_pub")
    e.i("s_mov_b64 exec, 1")
    e.i("buffer_store_dwordx2 v[128:129], v7, %s, s83 offen offset:768 sc0 sc1" % S4(S_WS))
    e.i("s_mov_b64 exec, -1")
    e.label("L_pub")
    e.i("s_nop 3")
    e.wait_vm_all()
    e.i("s_barrier")
    e.i("s_cmp_lg_u32 s%d, 0" % S_W)
    e.i("s_cbranch_scc1 L_polled")
    e.i("v_mov_b32 v104, 1")
    e.i("v_mov_b32 v105, 0")
    e.i("s_mov_b64 exec, 1")
    e.i("buffer_store_dword v104, v105, %s, s3 offen sc0 sc1" % S4(S_WS))
    e.i("s_mov_b64 exec, -1")
    stamp(e, 5)
    e.i("s_mov_b32 s83, 0")
    e.label("L_poll1")
    e.i("s_nop 3")
    e.i("v_readfirstlane_b32 s90, v102")
    e.i("s_cmp_ge_u32 s90, 8")
    e.i("s_cbranch_scc1 L_poll2")
    e.i("s_add_u32 s83, s83, 1")
    e.i("s_cmp_ge_u32 s83, 0x400000")
    e.i("s_cbranch_scc1 L_poll2")
    e.i("s_sleep 2")
    e.i("buffer_load_dword v102, v101, %s, 0 offen sc0 sc1" % S4(S_DBG))
    e.i("s_waitcnt vmcnt(0)")
    e.i("s_branch L_poll1")
    e.label("L_poll2")
    e.i("s_nop 3")
    e.i("s_andn2_b32 s90, s3, 0xff")
    e.i("v_and_b32 v105, 7, v1")
    e.i("v_lshlrev_b32 v105, 2, v105")
    e.label("L_poll3")
    e.i("s_nop 3")
    e.i("buffer_load_dword v104, v105, %s, s90 offen sc0 sc1" % S4(S_WS))
    e.i("s_waitcnt vmcnt(0)")
    e.i("v_cmp_ne_u32 vcc, 1, v104")
    e.i("s_cmp_eq_u64 vcc, 0")
    e.i("s_cbranch_scc1 L_polled")
    e.i("s_add_u32 s83, s83, 1")
    e.i("s_cmp_ge_u32 s83, 0x400000")
    e.i("s_cbranch_scc1 L_polled")
    e.i("s_sleep 1")
    e.i("s_branch L_poll3")
    e.label("L_polled")
    e.i("s_nop 3")
    e.i("s_barrier")
    stamp(e, 6)
    e.i("s_cmp_ge_u32 s%d, 3" % S_W)
    e.i("s_cbranch_scc1 L_rec_h")
    e.i("v_mov_b32 v8, 768")
    for s in range(8):
        e.i("s_add_u32 s87, s86, %d" % (s * 1024))
        e.i("buffer_load_dwordx2 %s, v8, %s, s87 offen sc0 sc1" % (R(104 + 2 * s, 2), S4(S_WS)))
        e.i("buffer_load_dword v%d, v7, %s, s87 offen sc0 sc1" % (120 + s, S4(S_WS)))
    e.i("s_waitcnt vmcnt(0)")
    e.i("v_max3_f32 v30, v104, v106, v108")
    e.i("v_max3_f32 v31, v110, v112, v114")
    e.i("v_max3_f32 v30, v30, v116, v118")
    e.i("v_max_f32 v30, v30, v31")
    e.i("s_mov_b32 s90, %s" % f32(LOG2E))
    for s in range(8):
        e.i("v_sub_f32 v%d, v%d, v30" % (32 + s, 104 + 2 * s))
    for s in range(8):
        e.i("v_mul_f32 v%d, s90, v%d" % (32 + s, 32 + s))
    for s in range(8):
        e.i("v_exp_f32 v%d, v%d" % (32 + s, 32 + s))
    e.i("v_mul_f32 v40, v32, v120")
    e.i("v_mul_f32 v41, v32, v105")
    for s in range(1, 8):
        e.i("v_fmac_f32 v40, v%d, v%d" % (32 + s, 120 + s))
        e.i("v_fmac_f32 v41, v%d, v%d" % (32 + s, 105 + 2 * s))
    e.i("v_rcp_f32 v42, v41")
    e.i("v_mul_f32 v43, v40, v42")
    e.i("v_fma_f32 v44, -v43, v41, v40")
    e.i("v_fmac_f32 v43, v44, v42")
    bf16_round(e, 43, 44)
    e.i("ds_write_b32 v7, v43 offset:%d" % T_O)
    e.i("s_branch L_rec_join")
    e.label("L_rec_h")
    e.i("s_nop 3")
    e.i("s_cmp_lg_u32 s%d, 3" % S_W)
    e.i("s_cbranch_scc1 L_rec_join")
    e.i("v_lshlrev_b32 v4, 2, v1")
    e.i("s_lshl_b32 s87, s%d, 12" % S_H)
    e.i("s_add_u32 s87, s87, %d" % REC2_OFF)
    for s in range(8):
        e.i("buffer_load_dword v%d, v4, %s, s87 offen offset:%d sc0 sc1" % (104 + s, S4(S_WS), s * 512))
        e.i("buffer_load_dword v%d, v4, %s, s87 offen offset:%d sc0 sc1" % (112 + s, S4(S_WS), s * 512 + 192))
    e.i("s_waitcnt vmcnt(0)")
    for o in (104, 112):
        for a, b in ((0, 1), (2, 3), (4, 5), (6, 7), (0, 2), (4, 6), (0, 4)):
            e.i("v_add_f32 v%d, v%d, v%d" % (o + a, o + a, o + b))
    bf16_round_pair(e, 104, 112, 105)
    e.i("v_mul_f32 v104, v104, v112")
    bf16_round(e, 104, 105)
    e.i("s_mov_b32 exec_hi, 0xffff")
    e.i("ds_write_b32 v4, v104 offset:%d" % (T_O + 768))
    e.i("s_mov_b64 exec, -1")
    e.label("L_rec_join")
    e.i("s_nop 3")
    e.i("s_waitcnt lgkmcnt(0)")
    e.i("s_barrier")
    stamp(e, 7)
    e.i("s_mul_i32 s90, s%d, 96" % S_W)
    e.i("v_lshlrev_b32 v8, 2, v60")
    e.i("v_add_u32 v9, s90, v8")
    for i in range(4):
        e.i("ds_read_b32 v%d, v9 offset:%d" % (50 + i, T_O + 24 * i))
    e.i("s_mul_i32 s90, s%d, 24" % S_W)
    e.i("v_add_u32 v9, s90, v8")
    e.i("ds_read_b32 v54, v9 offset:%d" % (T_O + 768))
    e.i("s_waitcnt lgkmcnt(0)")
    A, B = 120, 128
    for i in range(4):
        for k in range(4):
            e.i("v_lshlrev_b32 v44, 16, v%d" % (64 + 4 * i + k))
            e.i("v_and_b32 v45, s%d, v%d" % (S_MASK, 64 + 4 * i + k))
            op = "v_mul_f32" if i == 0 else "v_fmac_f32"
            e.i("%s v%d, v%d, v44" % (op, A + 2 * k, 50 + i))
            e.i("%s v%d, v%d, v45" % (op, A + 2 * k + 1, 50 + i))
    for k in range(4):
        e.i("v_lshlrev_b32 v44, 16, v%d" % (80 + k))
        e.i("v_and_b32 v45, s%d, v%d" % (S_MASK, 80 + k))
        e.i("v_mul_f32 v%d, v54, v44" % (B + 2 * k))
        e.i("v_mul_f32 v%d, v54, v45" % (B + 2 * k + 1))
    e.i("s_mul_i32 s90, s%d, %d" % (S_W, 6 * 320))
    e.i("v_mul_u32_u24 v8, 320, v60")
    e.i("v_lshlrev_b32 v9, 5, v61")
    e.i("v_add3_u32 v8, v8, v9, s90")
    e.i("s_mov_b32 exec_hi, 0x0fffffff")
    e.i("ds_write_b128 v8, %s offset:%d" % (R(A, 4), T_PA))
    e.i("ds_write_b128 v8, %s offset:%d" % (R(A + 4, 4), T_PA + 16))
    e.i("ds_write_b128 v8, %s offset:%d" % (R(B, 4), T_PB))
    e.i("ds_write_b128 v8, %s offset:%d" % (R(B + 4, 4), T_PB + 16))
    e.i("s_mov_b64 exec, -1")
    e.i("s_waitcnt lgkmcnt(0)")
    e.i("s_barrier")
    stamp(e, 8)
    e.i("s_cmp_ge_u32 s%d, 3" % S_W)
    e.i("s_cbranch_scc1 L_tail_sync")
    e.i("v_cmp_le_u32 vcc, 80, v0")
    e.i("v_mov_b32 v8, 0")
    e.i("v_mov_b32 v9, %d" % (15360 - 320))
    e.i("v_cndmask_b32 v8, v8, v9, vcc")
    e.i("v_add_u32 v8, v8, v7")
    for sl in range(48):
        e.i("ds_read_b32 v%d, v8 offset:%d" % (140 + sl, T_PA + sl * 320))
    e.i("s_waitcnt lgkmcnt(0)")
    for st in (24, 12, 6, 3):
        for k in range(st):
            e.i("v_add_f32 v%d, v%d, v%d" % (140 + k, 140 + k, 140 + k + st))
    e.i("v_add_f32 v140, v140, v141")
    e.i("v_add_f32 v140, v140, v142")
    e.i("s_lshl_b32 s90, s%d, 5" % S_S)
    e.i("s_add_u32 s90, s90, s%d" % S_H)
    e.i("s_mul_i32 s90, s90, 640")
    e.i("s_add_u32 s90, s90, %d" % PART_OFF)
    e.i("v_cmp_gt_u32 vcc, 160, v0")
    e.i("s_and_saveexec_b64 s[30:31], vcc")
    e.i("buffer_store_dword v140, v7, %s, s90 offen sc0 sc1" % S4(S_WS))
    e.i("s_mov_b64 exec, -1")
    e.label("L_tail_sync")
    e.i("s_nop 3")
    e.i("s_waitcnt vmcnt(0)")
    e.i("s_barrier")
    e.i("s_cmp_lg_u32 s%d, 0" % S_W)
    e.i("s_cbranch_scc1 L_tail_w")
    e.i("s_mov_b64 exec, 1")
    e.i("v_mov_b32 v8, 1")
    e.i("s_lshl_b32 s90, s%d, 2" % S_S)
    e.i("s_add_u32 s90, s90, 128")
    e.i("v_mov_b32 v9, s90")
    e.i("buffer_atomic_add v8, v9, %s, 0 offen sc0 sc1" % S4(S_DBG))
    e.i("s_waitcnt vmcnt(0)")
    e.i("v_mov_b32 v9, %d" % T_FLAG)
    e.i("ds_write_b32 v9, v8")
    e.i("s_mov_b64 exec, -1")
    e.label("L_tail_w")
    e.i("s_nop 3")
    e.i("s_waitcnt lgkmcnt(0)")
    e.i("s_barrier")
    e.i("v_mov_b32 v9, %d" % T_FLAG)
    e.i("ds_read_b32 v8, v9")
    e.i("s_waitcnt lgkmcnt(0)")
    stamp(e, 9)
    stamp_store(e, 17, 0)
    e.i("v_readfirstlane_b32 s90, v8")
    e.i("s_cmp_lg_u32 s90, 31")
    e.i("s_cbranch_scc1 L_exit")
    e.i("s_cmp_ge_u32 s%d, 3" % S_W)
    e.i("s_cbranch_scc1 L_tail_fin2")
    e.i("s_mul_i32 s90, s%d, %d" % (S_S, 32 * 640))
    e.i("s_add_u32 s90, s90, %d" % PART_OFF)
    for hh in range(32):
        e.i("buffer_load_dword v%d, v7, %s, s90 offen sc0 sc1" % (140 + hh, S4(S_WS)))
        if hh < 31:
            e.i("s_add_u32 s90, s90, 640")
    e.i("s_waitcnt vmcnt(0)")
    for st in (16, 8, 4, 2, 1):
        for k in range(st):
            e.i("v_add_f32 v%d, v%d, v%d" % (140 + k, 140 + k, 140 + k + st))
    bf16_round(e, 140, 141)
    e.i("ds_write_b32 v7, v140 offset:%d" % T_FIN)
    e.label("L_tail_fin2")
    e.i("s_nop 3")
    e.i("s_waitcnt lgkmcnt(0)")
    e.i("s_barrier")
    e.i("s_cmp_ge_u32 s%d, 2" % S_W)
    e.i("s_cbranch_scc1 L_exit")
    e.i("ds_read_b32 v8, v7 offset:%d" % T_FIN)
    e.i("ds_read_b32 v9, v7 offset:%d" % (T_FIN + 320))
    e.i("s_waitcnt lgkmcnt(0)")
    e.i("v_mul_f32 v8, s91, v8")
    e.i("v_mov_b32 v10, s91")
    e.i("v_sub_f32 v10, 1.0, v10")
    bf16_round(e, 10, 11)
    e.i("v_mul_f32 v9, v10, v9")
    bf16_round_pair(e, 8, 9, 11)
    e.i("v_add_f32 v8, v8, v9")
    e.i("v_cvt_pk_bf16_f32 v8, v8, v8")
    e.i("s_mul_i32 s90, s%d, 160" % S_S)
    e.i("v_lshlrev_b32 v9, 1, v0")
    e.i("v_cmp_gt_u32 vcc, 80, v0")
    e.i("s_and_saveexec_b64 s[30:31], vcc")
    e.i("buffer_store_short v8, v9, %s, s90 offen" % S4(S_OUT))
    e.i("s_mov_b64 exec, -1")
    stamp(e, 10)
    stamp_store(e, 17, 0)
    e.label("L_exit")
    e.i("s_endpgm")


def descriptor(name, vgpr, sgpr=102):
    acc = (vgpr + 3) // 4 * 4
    return """.p2align 6
.amdhsa_kernel %s
  .amdhsa_next_free_vgpr %d
  .amdhsa_next_free_sgpr %d
  .amdhsa_accum_offset %d
  .amdhsa_group_segment_fixed_size 0
  .amdhsa_kernarg_size 104
  .amdhsa_user_sgpr_count 2
  .amdhsa_user_sgpr_kernarg_segment_ptr 1
  .amdhsa_system_sgpr_workgroup_id_x 1
.end_amdhsa_kernel
""" % (name, vgpr, sgpr, acc)


KPRE = 5
KLATE = False
QBAR = False
KPACE = 2
QSLEEP0 = 100
QSLEEP1 = 16


def main():
    global STAMPS, KPRE, KLATE, NT, QBAR, KPACE, QSLEEP0, QSLEEP1
    outf = OUT
    for a in sys.argv[1:]:
        if a == "stamps":
            STAMPS = True
        elif a.startswith("out="):
            outf = a[4:]
        elif a.startswith("kpre="):
            KPRE = int(a[5:])
        elif a == "klate":
            KLATE = True
        elif a.startswith("kpace="):
            KPACE = int(a[6:])
        elif a.startswith("qs0="):
            QSLEEP0 = int(a[4:])
        elif a.startswith("qs1="):
            QSLEEP1 = int(a[4:])
        elif a == "qbar":
            QBAR = True
        elif a == "nont":
            NT = ""
    ref = open(OUT + ".ref").read().splitlines()
    head = []
    for ln in ref:
        if ln.startswith(";") and "@launch" not in ln:
            head.append(ln)
        elif ln.startswith(";"):
            continue
        else:
            break
    e1 = Emit()
    fused_kernel(e1)
    txt = "\n".join(head) + "\n"
    txt += "; @launch grid=(256,1,1) block=(512,1,1) lds=%d\n" % (FUSED_LDS + 192)
    txt += '.amdgcn_target "amdgcn-amd-amdhsa--gfx950"\n.text\n'
    txt += e1.text()
    txt += '.section .rodata,"a"\n'
    txt += descriptor(KNAME, 256)
    open(outf, "w").write(txt)


if __name__ == "__main__":
    main()
```

```python
import struct
import sys

sys.path.insert(0, "gen")
from emit import Emit

OUT = "gated_mix__gqa_block_cached__glu_gated_bilinear__decode.s"


def f32(x):
    return "0x%08x" % struct.unpack("<I", struct.pack("<f", x))[0]


LOG2E = 1.4426950408889634
SCALE = 192 ** -0.5

KV_BYTES = 100663296
WQ_BYTES = 640 * 6144 * 2
WO_BYTES = 6144 * 640 * 2
WG_BYTES = 640 * 1536 * 2
WD_BYTES = 1536 * 640 * 2
WS_BYTES = 402653184
PART_OFF = 0x100000

S_K, S_V, S_WQ, S_X, S_WG, S_WU, S_WS, S_WO, S_WD, S_GW, S_OUT, S_DBG = (
    32, 36, 40, 44, 48, 52, 56, 60, 64, 68, 72, 76)
S_H, S_S, S_W = 80, 81, 82
S_MASK = 89

NT = " nt"
STAMPS = False
STAMP_OFF = 0x800000


STAMP_REGS = [92, 94, 96, 98, 100, 4, 6, 8, 10, 12, 14, 16, 18, 20, 22, 24, 26]


def stamp(e, n):
    if STAMPS:
        e.i("s_memrealtime s[%d:%d]" % (STAMP_REGS[n], STAMP_REGS[n] + 1))


def stamp_store(e, nst, kidx, va=250, vb=251):
    if not STAMPS:
        return
    e.i("s_waitcnt lgkmcnt(0)")
    e.i("s_lshl_b32 s90, s2, 3")
    e.i("s_add_u32 s90, s90, s%d" % S_W)
    e.i("s_lshl_b32 s90, s90, 7")
    e.i("s_add_u32 s90, s90, %d" % (STAMP_OFF + kidx * 0x100000))
    e.i("s_mov_b64 exec, 1")
    e.i("v_mov_b32 v%d, 0" % va)
    for n in range(nst):
        e.i("v_mov_b32 v%d, s%d" % (vb, STAMP_REGS[n]))
        e.i("buffer_store_dword v%d, v%d, %s, s90 offen offset:%d" % (vb, va, S4(S_WS), 4 * n))
    e.i("s_mov_b64 exec, -1")


def srd(e, base, ptr, nbytes):
    e.i("s_mov_b32 s%d, s%d" % (base, ptr))
    e.i("s_and_b32 s%d, s%d, 0xffff" % (base + 1, ptr + 1))
    e.i("s_mov_b32 s%d, %d" % (base + 2, nbytes))
    e.i("s_mov_b32 s%d, 0x00020000" % (base + 3))


def R(a, n):
    return "v[%d:%d]" % (a, a + n - 1)


def S4(a):
    return "s[%d:%d]" % (a, a + 3)


def common_prologue(e, exit_label):
    e.i("s_cmp_ge_u32 s2, 256")
    e.i("s_cbranch_scc1 %s" % exit_label)
    e.i("s_load_dwordx16 s[4:19], s[0:1], 0")
    e.i("s_load_dwordx8 s[20:27], s[0:1], 64")
    e.i("s_load_dwordx2 s[28:29], s[0:1], 96")
    e.i("v_and_b32 v1, 63, v0")
    e.i("v_lshrrev_b32 v4, 6, v0")
    e.i("v_readfirstlane_b32 s%d, v4" % S_W)
    e.i("s_and_b32 s%d, s2, 7" % S_H)
    e.i("s_lshl_b32 s%d, s%d, 2" % (S_H, S_H))
    e.i("s_lshr_b32 s%d, s2, 3" % S_S)
    e.i("s_and_b32 s83, s%d, 3" % S_S)
    e.i("s_add_u32 s%d, s%d, s83" % (S_H, S_H))
    e.i("s_lshr_b32 s%d, s2, 5" % S_S)
    e.i("s_mov_b32 s%d, 0xffff0000" % S_MASK)


def dpp_full_reduce(e, regs):
    for mod in ("row_shr:1 row_mask:0xf bank_mask:0xf bound_ctrl:0",
                "row_shr:2 row_mask:0xf bank_mask:0xf bound_ctrl:0",
                "row_shr:4 row_mask:0xf bank_mask:0xf bound_ctrl:0",
                "row_shr:8 row_mask:0xf bank_mask:0xf bound_ctrl:0",
                "row_bcast:15 row_mask:0xa bank_mask:0xf",
                "row_bcast:31 row_mask:0xc bank_mask:0xf"):
        for r in regs:
            e.i("v_add_f32_dpp v%d, v%d, v%d %s" % (r, r, r, mod))


def reduce24(e, acc):
    for i in range(12):
        e.i("v_permlane32_swap_b32 v%d, v%d" % (acc + 2 * i, acc + 2 * i + 1))
    for i in range(12):
        e.i("v_add_f32 v%d, v%d, v%d" % (acc + 2 * i, acc + 2 * i, acc + 2 * i + 1))
    for k in range(6):
        e.i("v_permlane16_swap_b32 v%d, v%d" % (acc + 4 * k, acc + 4 * k + 2))
    for k in range(6):
        e.i("v_add_f32 v%d, v%d, v%d" % (acc + 4 * k, acc + 4 * k, acc + 4 * k + 2))
    for k in range(6):
        e.i("v_add_f32_dpp v%d, v%d, v%d row_ror:8 row_mask:0xf bank_mask:0xf" % (acc + 4 * k, acc + 4 * k, acc + 4 * k))


def fma_slot(e, base, acc, coef, temps):
    nt = len(temps)
    for k in range(12):
        t0 = temps[(2 * k) % nt]
        t1 = temps[(2 * k + 1) % nt]
        e.i("v_lshlrev_b32 v%d, 16, v%d" % (t0, base + k))
        e.i("v_and_b32 v%d, s%d, v%d" % (t1, S_MASK, base + k))
        e.i("v_fmac_f32 v%d, v%d, v%d" % (acc + 2 * k, coef, t0))
        e.i("v_fmac_f32 v%d, v%d, v%d" % (acc + 2 * k + 1, coef, t1))


def bf16_round_pair(e, a, b, t):
    e.i("v_cvt_pk_bf16_f32 v%d, v%d, v%d" % (t, a, b))
    e.i("v_lshlrev_b32 v%d, 16, v%d" % (a, t))
    e.i("v_and_b32 v%d, s%d, v%d" % (b, S_MASK, t))


def bf16_round(e, a, t):
    e.i("v_cvt_pk_bf16_f32 v%d, v%d, v%d" % (t, a, a))
    e.i("v_lshlrev_b32 v%d, 16, v%d" % (a, t))


L_RED = 0
L_FFN = 6144
L_QB = 9216
L_ML = 9600
MAIN_LDS = 10240

ACC = 8
QR = 32
SC = 44
SLOT0 = 64


def slot(t):
    return SLOT0 + 12 * t


def kv_loads(e, srdbase, t, tagp, dst=None):
    if dst is None:
        dst = t
    e.i("s_add_u32 s88, s87, %d" % (t * 3072))
    for j in range(3):
        e.i("buffer_load_dwordx4 %s, v2, %s, s88 offen offset:%d%s" % (R(slot(dst) + 4 * j, 4), S4(srdbase), j * 128, NT),
            tag=(tagp, t, j))


FLAG_OFF = 0x200000
REC2_OFF = 0x80000
QREC_OFF = 0x300000
KNAME = "gated_mix__gqa_block_cached__glu_gated_bilinear__decode_kernel"

T_O = 10240
T_PA = T_O + 1024
T_PB = T_PA + 15360
T_FIN = T_PB + 15360
T_FLAG = T_FIN + 1024
FUSED_LDS = 157696
LK = 10240
LV = LK + 49152


def fused_kernel(e):
    name = KNAME
    e.raw(".globl %s" % name)
    e.raw(".p2align 8")
    e.raw(".type %s,@function" % name)
    e.raw("%s:" % name)
    common_prologue(e, "L_exit")
    e.i("v_lshrrev_b32 v4, 3, v1")
    e.i("v_and_b32 v5, 7, v1")
    e.i("v_lshlrev_b32 v5, 4, v5")
    e.i("v_mul_u32_u24 v2, 0x180, v4")
    e.i("v_add_u32 v2, v2, v5")
    e.i("v_mul_u32_u24 v3, 12288, v4")
    e.i("v_add_u32 v3, v3, v5")
    e.i("v_mul_u32_u24 v7, 3072, v4")
    e.i("v_add_u32 v7, v7, v5")
    e.i("v_lshlrev_b32 v55, 1, v4")
    for r in list(range(32, 48)) + [54, 60] + [slot(15) + r for r in range(12)]:
        e.i("v_mov_b32 v%d, 0" % r)
    e.i("s_mul_i32 s86, s%d, 80" % S_S)
    e.i("s_mul_i32 s83, s%d, 10" % S_W)
    e.i("s_add_u32 s86, s86, s83")
    e.i("s_lshl_b32 s88, s86, 1")
    e.i("s_mul_i32 s85, s86, 12288")
    e.i("s_mul_i32 s83, s%d, 384" % S_H)
    e.i("s_add_u32 s85, s85, s83")
    e.i("s_add_u32 s84, s85, %d" % (8 * 12288))
    e.i("s_mul_i32 s86, s86, 3072")
    e.i("s_mul_i32 s83, s%d, 96" % S_H)
    e.i("s_add_u32 s86, s86, s83")
    e.i("s_add_u32 s90, s86, %d" % (8 * 3072))
    e.i("s_mul_i32 s87, s%d, %d" % (S_H, 8192 * 384))
    e.i("s_mul_i32 s83, s%d, %d" % (S_S, 1024 * 384))
    e.i("s_add_u32 s87, s87, s83")
    e.i("s_mul_i32 s83, s%d, %d" % (S_W, 128 * 384))
    e.i("s_add_u32 s87, s87, s83")
    e.i("s_lshl_b32 s91, s%d, 8" % S_H)
    e.i("s_lshl_b32 s83, s%d, 2" % S_S)
    e.i("s_add_u32 s91, s91, s83")
    e.i("s_add_u32 s3, s91, %d" % FLAG_OFF)
    e.i("s_waitcnt lgkmcnt(0)")
    stamp(e, 0)
    srd(e, S_X, 4, 1280)
    srd(e, S_WG, 16, WG_BYTES)
    srd(e, S_WU, 18, WG_BYTES)
    srd(e, S_WQ, 10, WQ_BYTES)
    srd(e, S_K, 6, KV_BYTES)
    srd(e, S_WS, 28, WS_BYTES)
    e.i("buffer_load_ushort v53, v55, %s, s88 offen" % S4(S_X), tag="xa")
    for j in range(3):
        e.i("buffer_load_dwordx4 %s, v3, %s, s85 offen offset:%d" % (R(slot(14) + 4 * j, 4), S4(S_WQ), j * 128), tag=("wq", 0, j))
    e.i("s_mov_b32 exec_lo, 0x3f3f3f3f")
    e.i("s_mov_b32 exec_hi, 0x3f3f3f3f")
    e.i("buffer_load_dwordx4 v[32:35], v7, %s, s86 offen" % S4(S_WG), tag="ga")
    e.i("buffer_load_dwordx4 v[40:43], v7, %s, s86 offen" % S4(S_WU), tag="ua")
    e.i("s_mov_b64 exec, 0x3f3f")
    e.i("buffer_load_dwordx4 v[36:39], v7, %s, s90 offen" % S4(S_WG), tag="gb")
    e.i("buffer_load_dwordx4 v[44:47], v7, %s, s90 offen" % S4(S_WU), tag="ub")
    e.i("s_mov_b64 exec, 0xffff")
    e.i("buffer_load_ushort v54, v55, %s, s88 offen offset:16" % S4(S_X), tag="xb")
    for j in range(3):
        e.i("buffer_load_dwordx4 %s, v3, %s, s84 offen offset:%d" % (R(slot(15) + 4 * j, 4), S4(S_WQ), j * 128), tag=("wq", 1, j))
    e.i("s_mov_b64 exec, -1")
    srd(e, S_V, 8, KV_BYTES)
    srd(e, S_GW, 22, 1280)
    srd(e, S_WO, 12, WO_BYTES)
    srd(e, S_WD, 20, WD_BYTES)
    srd(e, S_OUT, 24, 1280)
    srd(e, S_DBG, 26, 256)
    e.i("v_lshlrev_b32 v6, 4, v1")
    e.i("s_cmp_eq_u32 s%d, 0" % S_W)
    e.i("s_cbranch_scc1 L_nokpre")
    e.i("s_mul_i32 s83, s%d, %d" % (S_W, 128 * 384))
    e.i("s_sub_u32 s84, s87, s83")
    e.i("s_cmp_eq_u32 s%d, 7" % S_W)
    e.i("s_cbranch_scc1 L_help7")
    e.i("s_sub_u32 s83, s%d, 1" % S_W)
    e.i("s_lshl_b32 s83, s83, 13")
    e.i("s_add_u32 s84, s84, s83")
    e.i("s_add_u32 s83, s83, %d" % LK)
    for i in range(8):
        e.i("s_mov_b32 m0, s83")
        e.i("s_add_u32 s83, s83, 1024")
        e.i("buffer_load_dwordx4 v6, %s, s84 offen%s lds" % (S4(S_K), NT))
        e.i("s_add_u32 s84, s84, 1024")
    e.i("s_branch L_helpdone")
    e.label("L_help7")
    e.i("s_nop 3")
    e.i("s_mov_b32 s83, %d" % LV)
    for i in range(12):
        e.i("s_mov_b32 m0, s83")
        e.i("s_add_u32 s83, s83, 1024")
        e.i("buffer_load_dwordx4 v6, %s, s84 offen%s lds" % (S4(S_V), NT))
        e.i("s_add_u32 s84, s84, 1024")
    e.vm_issued -= 12
    e.label("L_helpdone")
    e.i("s_nop 3")
    for t in range(KPRE):
        kv_loads(e, S_K, t, "k")
    e.label("L_nokpre")
    e.i("s_nop 3")
    FA = [slot(13) + r for r in range(12)] + [56, 57, 58, 59]
    e.i("s_cmp_eq_u32 s%d, 0" % S_W)
    e.i("s_cbranch_scc0 L_w17")
    e.i("s_waitcnt vmcnt(0)")
    e.label("L_w17")
    e.i("s_nop 3")
    e.wait_vm(("wq", 1, 2))
    stamp(e, 11)
    e.i("v_lshlrev_b32 v53, 16, v53")
    e.i("v_lshlrev_b32 v54, 16, v54")
    for m, (ra, rb) in enumerate(((32, 36), (40, 44))):
        for k in range(4):
            e.i("v_lshlrev_b32 v60, 16, v%d" % (ra + k))
            e.i("v_and_b32 v61, s%d, v%d" % (S_MASK, ra + k))
            e.i("v_lshlrev_b32 v62, 16, v%d" % (rb + k))
            e.i("v_and_b32 v63, s%d, v%d" % (S_MASK, rb + k))
            e.i("v_mul_f32 v%d, v53, v60" % FA[m * 8 + 2 * k])
            e.i("v_mul_f32 v%d, v53, v61" % FA[m * 8 + 2 * k + 1])
            e.i("v_fmac_f32 v%d, v54, v62" % FA[m * 8 + 2 * k])
            e.i("v_fmac_f32 v%d, v54, v63" % FA[m * 8 + 2 * k + 1])
    for k in range(12):
        e.i("v_lshlrev_b32 v60, 16, v%d" % (slot(14) + k))
        e.i("v_and_b32 v61, s%d, v%d" % (S_MASK, slot(14) + k))
        e.i("v_lshlrev_b32 v62, 16, v%d" % (slot(15) + k))
        e.i("v_and_b32 v63, s%d, v%d" % (S_MASK, slot(15) + k))
        e.i("v_mul_f32 v%d, v53, v60" % (ACC + 2 * k))
        e.i("v_mul_f32 v%d, v53, v61" % (ACC + 2 * k + 1))
        e.i("v_fmac_f32 v%d, v54, v62" % (ACC + 2 * k))
        e.i("v_fmac_f32 v%d, v54, v63" % (ACC + 2 * k + 1))
    for i in range(8):
        e.i("v_permlane32_swap_b32 v%d, v%d" % (FA[2 * i], FA[2 * i + 1]))
    for i in range(8):
        e.i("v_add_f32 v%d, v%d, v%d" % (FA[2 * i], FA[2 * i], FA[2 * i + 1]))
    for k in range(4):
        e.i("v_permlane16_swap_b32 v%d, v%d" % (FA[4 * k], FA[4 * k + 2]))
    for k in range(4):
        e.i("v_add_f32 v%d, v%d, v%d" % (FA[4 * k], FA[4 * k], FA[4 * k + 2]))
    for k in range(4):
        e.i("v_add_f32_dpp v%d, v%d, v%d row_ror:8 row_mask:0xf bank_mask:0xf" % (FA[4 * k], FA[4 * k], FA[4 * k]))
    reduce24(e, ACC)
    e.i("v_and_b32 v4, 7, v1")
    e.i("v_lshlrev_b32 v4, 5, v4")
    e.i("v_bfe_u32 v5, v1, 4, 1")
    e.i("v_lshlrev_b32 v5, 3, v5")
    e.i("v_add_u32 v4, v4, v5")
    e.i("v_bfe_u32 v5, v1, 5, 1")
    e.i("v_lshlrev_b32 v5, 2, v5")
    e.i("v_add_u32 v7, v4, v5")
    e.i("s_mul_i32 s90, s%d, 384" % S_W)
    e.i("v_add_u32 v60, s90, v7")
    e.i("s_mul_i32 s90, s%d, 768" % S_W)
    e.i("v_add_u32 v7, s90, v7")
    for k in range(6):
        e.i("ds_write_b32 v7, v%d offset:%d" % (ACC + 4 * k, (k >> 1) * 256 + (k & 1) * 16))
    e.i("s_mov_b32 exec_lo, 0x3f3f3f3f")
    e.i("s_mov_b32 exec_hi, 0x3f3f3f3f")
    for k in range(4):
        e.i("ds_write_b32 v60, v%d offset:%d" % (FA[4 * k], L_FFN + (k >> 1) * 192 + (k & 1) * 16))
    e.i("s_mov_b64 exec, -1")
    e.i("s_waitcnt lgkmcnt(0)")
    e.i("s_barrier")
    e.i("s_cmp_eq_u32 s%d, 0" % S_W)
    e.i("s_cbranch_scc1 L_sync0")
    done_b1 = e.vm_done
    e.i("s_mul_i32 s83, s%d, 12288" % S_W)
    e.i("s_add_u32 s83, s83, %d" % LV)
    e.i("s_mov_b32 s84, s87")
    for t in range(KPRE, 20):
        if t >= KPACE:
            e.wait_vm(("k", t - KPACE, 2))
        if t < 16:
            kv_loads(e, S_K, t, "k")
        else:
            for j in range(3):
                e.i("s_mov_b32 m0, s83")
                e.i("s_add_u32 s83, s83, 1024")
                e.i("buffer_load_dwordx4 v6, %s, s84 offen%s lds" % (S4(S_V), NT), tag=("k", t, j))
                e.i("s_add_u32 s84, s84, 1024")
    e.i("s_branch L_q_join")
    e.label("L_sync0")
    e.i("s_nop 3")
    after = (e.vm_issued, done_b1, dict(e.tagpos))
    if NOSYNC:
        e.i("s_branch L_q_join")
    e.i("v_lshlrev_b32 v4, 2, v1")
    for w in range(8):
        for i in range(3):
            e.i("ds_read_b32 v%d, v4 offset:%d" % (64 + 8 * i + w, w * 768 + i * 256))
        e.i("ds_read_b32 v%d, v4 offset:%d" % (88 + w, L_FFN + w * 384))
        e.i("ds_read_b32 v%d, v4 offset:%d" % (96 + w, L_FFN + w * 384 + 192))
    e.i("s_waitcnt lgkmcnt(0)")
    for o in (64, 72, 80, 88, 96):
        for a, b in ((0, 1), (2, 3), (4, 5), (6, 7), (0, 2), (4, 6), (0, 4)):
            e.i("v_add_f32 v%d, v%d, v%d" % (o + a, o + a, o + b))
    e.i("s_lshl_b32 s90, s%d, 3" % S_H)
    e.i("s_add_u32 s90, s90, s%d" % S_S)
    e.i("s_lshl_b32 s83, s90, 10")
    e.i("s_add_u32 s83, s83, %d" % QREC_OFF)
    for i in range(3):
        e.i("buffer_store_dword v%d, v4, %s, s83 offen offset:%d sc0 sc1" % (64 + 8 * i, S4(S_WS), i * 256))
    e.i("s_lshl_b32 s90, s90, 9")
    e.i("s_add_u32 s90, s90, %d" % REC2_OFF)
    e.i("s_mov_b32 exec_hi, 0xffff")
    e.i("buffer_store_dword v88, v4, %s, s90 offen sc0 sc1" % S4(S_WS))
    e.i("buffer_store_dword v96, v4, %s, s90 offen offset:192 sc0 sc1" % S4(S_WS))
    e.i("s_mov_b64 exec, 1")
    e.i("v_mov_b32 v60, 0")
    e.i("buffer_store_dword v60, v60, %s, s3 offen sc0 sc1" % S4(S_WS))
    e.i("s_waitcnt vmcnt(0)")
    e.i("v_mov_b32 v56, 1")
    e.i("s_lshl_b32 s90, s%d, 2" % S_H)
    e.i("v_mov_b32 v57, s90")
    e.i("buffer_atomic_add v56, v57, %s, 0 offen sc1" % S4(S_DBG))
    e.i("s_mov_b64 exec, -1")
    e.i("v_mov_b32 v57, s90")
    stamp(e, 12)
    e.i("s_mov_b32 s83, 0")
    e.i("s_sleep %d" % QSLEEP0)
    e.label("L_qpoll")
    e.i("s_nop 3")
    e.i("buffer_load_dword v56, v57, %s, 0 offen sc0 sc1" % S4(S_DBG))
    e.i("s_waitcnt vmcnt(0)")
    e.i("v_readfirstlane_b32 s90, v56")
    e.i("s_cmp_ge_u32 s90, 8")
    e.i("s_cbranch_scc1 L_qready")
    e.i("s_add_u32 s83, s83, 1")
    e.i("s_cmp_ge_u32 s83, 0x400000")
    e.i("s_cbranch_scc1 L_qready")
    e.i("s_sleep %d" % QSLEEP1)
    e.i("s_branch L_qpoll")
    e.label("L_qready")
    e.i("s_nop 3")
    stamp(e, 13)
    e.i("s_lshl_b32 s83, s%d, 13" % S_H)
    e.i("s_add_u32 s83, s83, %d" % QREC_OFF)
    for sp in range(8):
        for i in range(3):
            e.i("buffer_load_dword v%d, v4, %s, s83 offen offset:%d sc0 sc1" % (64 + 8 * i + sp, S4(S_WS), i * 256))
        if sp < 7:
            e.i("s_add_u32 s83, s83, 1024")
    e.i("s_waitcnt vmcnt(0)")
    for o in (64, 72, 80):
        for a, b in ((0, 1), (2, 3), (4, 5), (6, 7), (0, 2), (4, 6), (0, 4)):
            e.i("v_add_f32 v%d, v%d, v%d" % (o + a, o + a, o + b))
    e.i("v_lshlrev_b32 v4, 1, v1")
    for i in range(3):
        e.i("v_cvt_pk_bf16_f32 v%d, v%d, v%d" % (64 + 8 * i, 64 + 8 * i, 64 + 8 * i))
    for i in range(3):
        e.i("ds_write_b16 v4, v%d offset:%d" % (64 + 8 * i, L_QB + i * 128))
    e.i("s_waitcnt lgkmcnt(0)")
    stamp(e, 14)
    e.label("L_q_join")
    e.i("s_nop 3")
    e.i("s_barrier")
    e.i("s_cmp_eq_u32 s%d, 0" % S_W)
    e.i("s_cbranch_scc0 L_k0done")
    for t in range(16):
        for j in range(3):
            e.i("ds_read_b128 %s, v2 offset:%d" % (R(slot(t) + 4 * j, 4), LK + t * 3072 + j * 128))
    e.label("L_k0done")
    e.i("s_nop 3")
    e.vm_issued, e.vm_done, e.tagpos = after
    e.i("v_and_b32 v4, 7, v1")
    e.i("v_lshlrev_b32 v4, 4, v4")
    for j in range(3):
        e.i("ds_read_b128 %s, v4 offset:%d" % (R(QR + 4 * j, 4), L_QB + j * 128))
    e.i("s_waitcnt lgkmcnt(0)")
    stamp(e, 1)
    chains = ((4, 5, 6), (60, 61, 62))
    for t in range(16):
        c = chains[t & 1]
        for j in range(3):
            e.i("v_mov_b32 v%d, 0" % c[j])
        for j in range(3):
            e.wait_vm(("k", t, j))
            for r in range(4):
                e.i("v_dot2c_f32_bf16 v%d, v%d, v%d" % (c[j], slot(t) + 4 * j + r, QR + 4 * j + r))
        if t < 12:
            kv_loads(e, S_V, t + 4, "v", dst=t)
        if t:
            p = chains[(t - 1) & 1]
            e.i("v_add_f32 v%d, v%d, v%d" % (SC + t - 1, p[0], p[1]))
            e.i("v_add_f32 v%d, v%d, v%d" % (SC + t - 1, SC + t - 1, p[2]))
    stamp(e, 2)
    p = chains[1]
    e.i("v_add_f32 v%d, v%d, v%d" % (SC + 15, p[0], p[1]))
    e.i("v_add_f32 v%d, v%d, v%d" % (SC + 15, SC + 15, p[2]))
    for mod in ("quad_perm:[1,0,3,2]", "quad_perm:[2,3,0,1]", "row_half_mirror"):
        for t in range(16):
            e.i("v_add_f32_dpp v%d, v%d, v%d %s row_mask:0xf bank_mask:0xf" % (SC + t, SC + t, SC + t, mod))
    e.i("s_mov_b32 s90, %s" % f32(SCALE))
    for t in range(0, 16, 2):
        bf16_round_pair(e, SC + t, SC + t + 1, 32 + (t >> 1))
    for t in range(16):
        e.i("v_mul_f32 v%d, s90, v%d" % (SC + t, SC + t))
    for t in range(0, 16, 2):
        bf16_round_pair(e, SC + t, SC + t + 1, 32 + (t >> 1))
    e.i("v_max3_f32 v32, v%d, v%d, v%d" % (SC, SC + 1, SC + 2))
    e.i("v_max3_f32 v33, v%d, v%d, v%d" % (SC + 3, SC + 4, SC + 5))
    e.i("v_max3_f32 v34, v%d, v%d, v%d" % (SC + 6, SC + 7, SC + 8))
    e.i("v_max3_f32 v35, v%d, v%d, v%d" % (SC + 9, SC + 10, SC + 11))
    e.i("v_max3_f32 v36, v%d, v%d, v%d" % (SC + 12, SC + 13, SC + 14))
    e.i("v_max3_f32 v32, v32, v33, v%d" % (SC + 15))
    e.i("v_max3_f32 v34, v34, v35, v36")
    e.i("v_max_f32 v32, v32, v34")
    e.i("v_max_f32_dpp v32, v32, v32 row_ror:8 row_mask:0xf bank_mask:0xf")
    e.i("v_mov_b32 v33, v32")
    e.i("v_permlane16_swap_b32 v32, v33")
    e.i("v_max_f32 v32, v32, v33")
    e.i("v_mov_b32 v33, v32")
    e.i("v_permlane32_swap_b32 v32, v33")
    e.i("v_max_f32 v6, v32, v33")
    e.i("s_mov_b32 s90, %s" % f32(LOG2E))
    e.i("v_mul_f32 v33, s90, v6")
    for t in range(16):
        e.i("v_fma_f32 v%d, v%d, s90, -v33" % (SC + t, SC + t))
    for t in range(16):
        e.i("v_exp_f32 v%d, v%d" % (SC + t, SC + t))
    e.i("v_add_f32 v32, v%d, v%d" % (SC, SC + 1))
    e.i("v_add_f32 v33, v%d, v%d" % (SC + 2, SC + 3))
    for t in range(4, 16, 2):
        e.i("v_add_f32 v32, v32, v%d" % (SC + t))
        e.i("v_add_f32 v33, v33, v%d" % (SC + t + 1))
    e.i("v_add_f32 v5, v32, v33")
    for r in range(24):
        e.i("v_mov_b32 v%d, 0" % (ACC + r))
    e.i("v_mul_u32_u24 v60, 205, v1")
    e.i("v_lshrrev_b32 v60, 11, v60")
    e.i("v_mul_u32_u24 v61, 10, v60")
    e.i("v_sub_u32 v61, v1, v61")
    e.i("v_mul_u32_u24 v62, 1280, v60")
    e.i("v_lshlrev_b32 v63, 4, v61")
    e.i("v_add_u32 v62, v62, v63")
    e.i("v_mul_u32_u24 v3, 20, v1")
    e.i("s_mul_i32 s84, s%d, 192" % S_H)
    e.i("s_mul_i32 s83, s%d, 24" % S_W)
    e.i("s_add_u32 s84, s84, s83")
    e.i("s_mul_i32 s84, s84, 1280")
    e.i("s_mul_i32 s83, s%d, 160" % S_S)
    e.i("s_add_u32 s84, s84, s83")
    e.i("s_mul_i32 s85, s%d, 48" % S_H)
    e.i("s_mul_i32 s86, s%d, 6" % S_W)
    e.i("s_add_u32 s85, s85, s86")
    e.i("s_mul_i32 s85, s85, 1280")
    e.i("s_add_u32 s85, s85, s83")
    vt = list(range(32, 40))
    e.i("s_mul_i32 s90, s%d, 12288" % S_W)
    e.i("s_add_u32 s90, s90, %d" % LV)
    e.i("v_add_u32 v63, s90, v2")
    e.wait_vm(("k", 19, 2))
    for t in range(4):
        for j in range(3):
            e.i("ds_read_b128 %s, v63 offset:%d" % (R(slot(12 + t) + 4 * j, 4), t * 3072 + j * 128))
    for t in range(16):
        if t < 4:
            e.i("s_waitcnt lgkmcnt(%d)" % (9 - 3 * t))
            fma_slot(e, slot(12 + t), ACC, SC + t, vt)
        else:
            e.wait_vm(("v", t, 2))
            fma_slot(e, slot(t - 4), ACC, SC + t, vt)
        if t == 1:
            e.i("s_mov_b32 exec_hi, 0x0fffffff")
            for i in range(4):
                e.i("buffer_load_dwordx4 %s, v62, %s, s84 offen" % (R(208 + 4 * i, 4), S4(S_WO)), tag=("wo", i))
                if i < 3:
                    e.i("s_add_u32 s84, s84, %d" % (6 * 1280))
            e.i("buffer_load_dwordx4 %s, v62, %s, s85 offen" % (R(224, 4), S4(S_WD)), tag="wd")
            e.i("s_mov_b64 exec, -1")
        if t == 3:
            e.i("buffer_load_dwordx4 v[232:235], v3, %s, 0 offen" % S4(S_X), tag="gx0")
            e.i("buffer_load_dword v236, v3, %s, 0 offen offset:16" % S4(S_X), tag="gx1")
            e.i("buffer_load_dwordx4 v[240:243], v3, %s, 0 offen" % S4(S_GW), tag="gw0")
            e.i("buffer_load_dword v244, v3, %s, 0 offen offset:16" % S4(S_GW), tag="gw1")
            e.i("s_lshl_b32 s90, s%d, 2" % S_H)
            e.i("v_mov_b32 v245, s90")
            e.i("buffer_load_dword v246, v245, %s, 0 offen sc0 sc1" % S4(S_DBG), tag="cnt")
    stamp(e, 3)
    e.wait_vm("cnt")
    for k in range(5):
        e.i("v_lshlrev_b32 v44, 16, v%d" % (232 + k))
        e.i("v_and_b32 v45, s%d, v%d" % (S_MASK, 232 + k))
        e.i("v_lshlrev_b32 v46, 16, v%d" % (240 + k))
        e.i("v_and_b32 v47, s%d, v%d" % (S_MASK, 240 + k))
        e.i("v_mul_f32 v44, v44, v46")
        e.i("v_mul_f32 v45, v45, v47")
        bf16_round_pair(e, 44, 45, 46)
        if k == 0:
            e.i("v_add_f32 v48, v44, v45")
        else:
            e.i("v_add_f32 v48, v48, v44")
            e.i("v_add_f32 v48, v48, v45")
    reduce24(e, ACC)
    for k in range(6):
        e.i("ds_write_b32 v7, v%d offset:%d" % (ACC + 4 * k, (k >> 1) * 256 + (k & 1) * 16))
    dpp_full_reduce(e, [5, 48])
    e.i("s_mov_b32 s90, 0x3e000000")
    e.i("v_mul_f32 v5, s90, v5")
    e.i("s_lshl_b32 s90, s%d, 3" % S_W)
    e.i("s_add_u32 s90, s90, %d" % L_ML)
    e.i("v_mov_b32 v63, s90")
    e.i("v_mov_b32 v4, v6")
    e.i("s_mov_b32 exec_lo, 0")
    e.i("s_mov_b32 exec_hi, 0x80000000")
    e.i("ds_write_b64 v63, v[4:5]")
    e.i("s_mov_b64 exec, -1")
    bf16_round(e, 48, 44)
    e.i("s_mov_b32 s90, %s" % f32(LOG2E))
    e.i("v_mul_f32 v48, s90, v48")
    e.i("v_exp_f32 v48, -v48")
    e.i("v_add_f32 v48, 1.0, v48")
    e.i("v_rcp_f32 v48, v48")
    bf16_round(e, 48, 44)
    e.i("v_readlane_b32 s91, v48, 63")
    e.i("v_lshlrev_b32 v7, 2, v0")
    e.i("s_waitcnt lgkmcnt(0)")
    e.i("s_barrier")
    stamp(e, 4)
    e.i("s_lshl_b32 s86, s%d, 13" % S_H)
    e.i("s_cmp_ge_u32 s%d, 3" % S_W)
    e.i("s_cbranch_scc1 L_pub")
    e.i("v_mov_b32 v4, %d" % L_ML)
    for r in range(4):
        e.i("ds_read_b128 %s, v4 offset:%d" % (R(104 + 4 * r, 4), 16 * r))
    for w in range(8):
        e.i("ds_read_b32 v%d, v7 offset:%d" % (120 + w, w * 768))
    e.i("s_waitcnt lgkmcnt(0)")
    e.i("v_max3_f32 v128, v104, v106, v108")
    e.i("v_max3_f32 v129, v110, v112, v114")
    e.i("v_max3_f32 v128, v128, v116, v118")
    e.i("v_max_f32 v128, v128, v129")
    for w in range(8):
        e.i("v_sub_f32 v%d, v%d, v128" % (132 + w, 104 + 2 * w))
    for w in range(8):
        e.i("v_mul_f32 v%d, s90, v%d" % (132 + w, 132 + w))
    for w in range(8):
        e.i("v_exp_f32 v%d, v%d" % (132 + w, 132 + w))
    e.i("v_mul_f32 v130, v132, v120")
    e.i("v_mul_f32 v129, v132, v105")
    for w in range(1, 8):
        e.i("v_fmac_f32 v130, v%d, v%d" % (132 + w, 120 + w))
        e.i("v_fmac_f32 v129, v%d, v%d" % (132 + w, 105 + 2 * w))
    e.i("s_lshl_b32 s83, s%d, 10" % S_S)
    e.i("s_add_u32 s83, s83, s86")
    e.i("buffer_store_dword v130, v7, %s, s83 offen sc0 sc1" % S4(S_WS))
    e.i("s_cmp_lg_u32 s%d, 0" % S_W)
    e.i("s_cbranch_scc1 L_pub")
    e.i("s_mov_b64 exec, 1")
    e.i("buffer_store_dwordx2 v[128:129], v7, %s, s83 offen offset:768 sc0 sc1" % S4(S_WS))
    e.i("s_mov_b64 exec, -1")
    e.label("L_pub")
    e.i("s_nop 3")
    e.wait_vm_all()
    e.i("s_barrier")
    e.i("s_cmp_lg_u32 s%d, 0" % S_W)
    e.i("s_cbranch_scc1 L_polled")
    e.i("v_mov_b32 v104, 1")
    e.i("v_mov_b32 v105, 0")
    e.i("s_mov_b64 exec, 1")
    e.i("buffer_store_dword v104, v105, %s, s3 offen sc0 sc1" % S4(S_WS))
    e.i("s_mov_b64 exec, -1")
    stamp(e, 5)
    e.i("s_mov_b32 s83, 0")
    e.label("L_poll1")
    e.i("s_nop 3")
    e.i("v_readfirstlane_b32 s90, v246")
    e.i("s_cmp_ge_u32 s90, 8")
    e.i("s_cbranch_scc1 L_poll2")
    e.i("s_add_u32 s83, s83, 1")
    e.i("s_cmp_ge_u32 s83, 0x400000")
    e.i("s_cbranch_scc1 L_poll2")
    e.i("s_sleep 2")
    e.i("buffer_load_dword v246, v245, %s, 0 offen sc0 sc1" % S4(S_DBG))
    e.i("s_waitcnt vmcnt(0)")
    e.i("s_branch L_poll1")
    e.label("L_poll2")
    e.i("s_nop 3")
    e.i("s_andn2_b32 s90, s3, 0xff")
    e.i("v_and_b32 v105, 7, v1")
    e.i("v_lshlrev_b32 v105, 2, v105")
    e.label("L_poll3")
    e.i("s_nop 3")
    e.i("buffer_load_dword v104, v105, %s, s90 offen sc0 sc1" % S4(S_WS))
    e.i("s_waitcnt vmcnt(0)")
    e.i("v_cmp_ne_u32 vcc, 1, v104")
    e.i("s_cmp_eq_u64 vcc, 0")
    e.i("s_cbranch_scc1 L_polled")
    e.i("s_add_u32 s83, s83, 1")
    e.i("s_cmp_ge_u32 s83, 0x400000")
    e.i("s_cbranch_scc1 L_polled")
    e.i("s_sleep 1")
    e.i("s_branch L_poll3")
    e.label("L_polled")
    e.i("s_nop 3")
    e.i("s_barrier")
    stamp(e, 6)
    e.i("s_cmp_ge_u32 s%d, 3" % S_W)
    e.i("s_cbranch_scc1 L_rec_h")
    e.i("v_mov_b32 v8, 768")
    for s in range(8):
        e.i("s_add_u32 s87, s86, %d" % (s * 1024))
        e.i("buffer_load_dwordx2 %s, v8, %s, s87 offen sc0 sc1" % (R(104 + 2 * s, 2), S4(S_WS)))
        e.i("buffer_load_dword v%d, v7, %s, s87 offen sc0 sc1" % (120 + s, S4(S_WS)))
    e.i("s_waitcnt vmcnt(0)")
    e.i("v_max3_f32 v30, v104, v106, v108")
    e.i("v_max3_f32 v31, v110, v112, v114")
    e.i("v_max3_f32 v30, v30, v116, v118")
    e.i("v_max_f32 v30, v30, v31")
    e.i("s_mov_b32 s90, %s" % f32(LOG2E))
    for s in range(8):
        e.i("v_sub_f32 v%d, v%d, v30" % (32 + s, 104 + 2 * s))
    for s in range(8):
        e.i("v_mul_f32 v%d, s90, v%d" % (32 + s, 32 + s))
    for s in range(8):
        e.i("v_exp_f32 v%d, v%d" % (32 + s, 32 + s))
    e.i("v_mul_f32 v40, v32, v120")
    e.i("v_mul_f32 v41, v32, v105")
    for s in range(1, 8):
        e.i("v_fmac_f32 v40, v%d, v%d" % (32 + s, 120 + s))
        e.i("v_fmac_f32 v41, v%d, v%d" % (32 + s, 105 + 2 * s))
    e.i("v_rcp_f32 v42, v41")
    e.i("v_mul_f32 v43, v40, v42")
    e.i("v_fma_f32 v44, -v43, v41, v40")
    e.i("v_fmac_f32 v43, v44, v42")
    bf16_round(e, 43, 44)
    e.i("ds_write_b32 v7, v43 offset:%d" % T_O)
    e.i("s_branch L_rec_join")
    e.label("L_rec_h")
    e.i("s_nop 3")
    e.i("s_cmp_lg_u32 s%d, 3" % S_W)
    e.i("s_cbranch_scc1 L_rec_join")
    e.i("v_lshlrev_b32 v4, 2, v1")
    e.i("s_lshl_b32 s87, s%d, 12" % S_H)
    e.i("s_add_u32 s87, s87, %d" % REC2_OFF)
    for s in range(8):
        e.i("buffer_load_dword v%d, v4, %s, s87 offen offset:%d sc0 sc1" % (104 + s, S4(S_WS), s * 512))
        e.i("buffer_load_dword v%d, v4, %s, s87 offen offset:%d sc0 sc1" % (112 + s, S4(S_WS), s * 512 + 192))
    e.i("s_waitcnt vmcnt(0)")
    for o in (104, 112):
        for a, b in ((0, 1), (2, 3), (4, 5), (6, 7), (0, 2), (4, 6), (0, 4)):
            e.i("v_add_f32 v%d, v%d, v%d" % (o + a, o + a, o + b))
    bf16_round_pair(e, 104, 112, 105)
    e.i("v_mul_f32 v104, v104, v112")
    bf16_round(e, 104, 105)
    e.i("s_mov_b32 exec_hi, 0xffff")
    e.i("ds_write_b32 v4, v104 offset:%d" % (T_O + 768))
    e.i("s_mov_b64 exec, -1")
    e.label("L_rec_join")
    e.i("s_nop 3")
    e.i("s_waitcnt lgkmcnt(0)")
    e.i("s_barrier")
    stamp(e, 7)
    e.i("s_mul_i32 s90, s%d, 96" % S_W)
    e.i("v_lshlrev_b32 v8, 2, v60")
    e.i("v_add_u32 v9, s90, v8")
    for i in range(4):
        e.i("ds_read_b32 v%d, v9 offset:%d" % (50 + i, T_O + 24 * i))
    e.i("s_mul_i32 s90, s%d, 24" % S_W)
    e.i("v_add_u32 v9, s90, v8")
    e.i("ds_read_b32 v54, v9 offset:%d" % (T_O + 768))
    e.i("s_waitcnt lgkmcnt(0)")
    A, B = 120, 128
    for i in range(4):
        for k in range(4):
            e.i("v_lshlrev_b32 v44, 16, v%d" % (208 + 4 * i + k))
            e.i("v_and_b32 v45, s%d, v%d" % (S_MASK, 208 + 4 * i + k))
            op = "v_mul_f32" if i == 0 else "v_fmac_f32"
            e.i("%s v%d, v%d, v44" % (op, A + 2 * k, 50 + i))
            e.i("%s v%d, v%d, v45" % (op, A + 2 * k + 1, 50 + i))
    for k in range(4):
        e.i("v_lshlrev_b32 v44, 16, v%d" % (224 + k))
        e.i("v_and_b32 v45, s%d, v%d" % (S_MASK, 224 + k))
        e.i("v_mul_f32 v%d, v54, v44" % (B + 2 * k))
        e.i("v_mul_f32 v%d, v54, v45" % (B + 2 * k + 1))
    e.i("s_mul_i32 s90, s%d, %d" % (S_W, 6 * 320))
    e.i("v_mul_u32_u24 v8, 320, v60")
    e.i("v_lshlrev_b32 v9, 5, v61")
    e.i("v_add3_u32 v8, v8, v9, s90")
    e.i("s_mov_b32 exec_hi, 0x0fffffff")
    e.i("ds_write_b128 v8, %s offset:%d" % (R(A, 4), T_PA))
    e.i("ds_write_b128 v8, %s offset:%d" % (R(A + 4, 4), T_PA + 16))
    e.i("ds_write_b128 v8, %s offset:%d" % (R(B, 4), T_PB))
    e.i("ds_write_b128 v8, %s offset:%d" % (R(B + 4, 4), T_PB + 16))
    e.i("s_mov_b64 exec, -1")
    e.i("s_waitcnt lgkmcnt(0)")
    e.i("s_barrier")
    stamp(e, 8)
    e.i("s_cmp_ge_u32 s%d, 3" % S_W)
    e.i("s_cbranch_scc1 L_tail_sync")
    e.i("v_cmp_le_u32 vcc, 80, v0")
    e.i("v_mov_b32 v8, 0")
    e.i("v_mov_b32 v9, %d" % (15360 - 320))
    e.i("v_cndmask_b32 v8, v8, v9, vcc")
    e.i("v_add_u32 v8, v8, v7")
    for sl in range(48):
        e.i("ds_read_b32 v%d, v8 offset:%d" % (140 + sl, T_PA + sl * 320))
    e.i("s_waitcnt lgkmcnt(0)")
    for st in (24, 12, 6, 3):
        for k in range(st):
            e.i("v_add_f32 v%d, v%d, v%d" % (140 + k, 140 + k, 140 + k + st))
    e.i("v_add_f32 v140, v140, v141")
    e.i("v_add_f32 v140, v140, v142")
    e.i("s_lshl_b32 s90, s%d, 5" % S_S)
    e.i("s_add_u32 s90, s90, s%d" % S_H)
    e.i("s_mul_i32 s90, s90, 640")
    e.i("s_add_u32 s90, s90, %d" % PART_OFF)
    e.i("v_cmp_gt_u32 vcc, 160, v0")
    e.i("s_and_saveexec_b64 s[30:31], vcc")
    e.i("buffer_store_dword v140, v7, %s, s90 offen sc0 sc1" % S4(S_WS))
    e.i("s_mov_b64 exec, -1")
    e.label("L_tail_sync")
    e.i("s_nop 3")
    e.i("s_waitcnt vmcnt(0)")
    e.i("s_barrier")
    e.i("s_cmp_lg_u32 s%d, 0" % S_W)
    e.i("s_cbranch_scc1 L_tail_w")
    e.i("s_mov_b64 exec, 1")
    e.i("v_mov_b32 v8, 1")
    e.i("s_lshl_b32 s90, s%d, 2" % S_S)
    e.i("s_add_u32 s90, s90, 128")
    e.i("v_mov_b32 v9, s90")
    e.i("buffer_atomic_add v8, v9, %s, 0 offen sc0 sc1" % S4(S_DBG))
    e.i("s_waitcnt vmcnt(0)")
    e.i("v_mov_b32 v9, %d" % T_FLAG)
    e.i("ds_write_b32 v9, v8")
    e.i("s_mov_b64 exec, -1")
    e.label("L_tail_w")
    e.i("s_nop 3")
    e.i("s_waitcnt lgkmcnt(0)")
    e.i("s_barrier")
    e.i("v_mov_b32 v9, %d" % T_FLAG)
    e.i("ds_read_b32 v8, v9")
    e.i("s_waitcnt lgkmcnt(0)")
    stamp(e, 9)
    stamp_store(e, 17, 0)
    e.i("v_readfirstlane_b32 s90, v8")
    e.i("s_cmp_lg_u32 s90, 31")
    e.i("s_cbranch_scc1 L_exit")
    e.i("s_cmp_ge_u32 s%d, 3" % S_W)
    e.i("s_cbranch_scc1 L_tail_fin2")
    e.i("s_mul_i32 s90, s%d, %d" % (S_S, 32 * 640))
    e.i("s_add_u32 s90, s90, %d" % PART_OFF)
    for hh in range(32):
        e.i("buffer_load_dword v%d, v7, %s, s90 offen sc0 sc1" % (140 + hh, S4(S_WS)))
        if hh < 31:
            e.i("s_add_u32 s90, s90, 640")
    e.i("s_waitcnt vmcnt(0)")
    for st in (16, 8, 4, 2, 1):
        for k in range(st):
            e.i("v_add_f32 v%d, v%d, v%d" % (140 + k, 140 + k, 140 + k + st))
    bf16_round(e, 140, 141)
    e.i("ds_write_b32 v7, v140 offset:%d" % T_FIN)
    e.label("L_tail_fin2")
    e.i("s_nop 3")
    e.i("s_waitcnt lgkmcnt(0)")
    e.i("s_barrier")
    e.i("s_cmp_ge_u32 s%d, 2" % S_W)
    e.i("s_cbranch_scc1 L_exit")
    e.i("ds_read_b32 v8, v7 offset:%d" % T_FIN)
    e.i("ds_read_b32 v9, v7 offset:%d" % (T_FIN + 320))
    e.i("s_waitcnt lgkmcnt(0)")
    e.i("v_mul_f32 v8, s91, v8")
    e.i("v_mov_b32 v10, s91")
    e.i("v_sub_f32 v10, 1.0, v10")
    bf16_round(e, 10, 11)
    e.i("v_mul_f32 v9, v10, v9")
    bf16_round_pair(e, 8, 9, 11)
    e.i("v_add_f32 v8, v8, v9")
    e.i("v_cvt_pk_bf16_f32 v8, v8, v8")
    e.i("s_mul_i32 s90, s%d, 160" % S_S)
    e.i("v_lshlrev_b32 v9, 1, v0")
    e.i("v_cmp_gt_u32 vcc, 80, v0")
    e.i("s_and_saveexec_b64 s[30:31], vcc")
    e.i("buffer_store_short v8, v9, %s, s90 offen" % S4(S_OUT))
    e.i("s_mov_b64 exec, -1")
    stamp(e, 10)
    stamp_store(e, 17, 0)
    e.label("L_exit")
    e.i("s_endpgm")


def descriptor(name, vgpr, sgpr=102):
    acc = (vgpr + 3) // 4 * 4
    return """.p2align 6
.amdhsa_kernel %s
  .amdhsa_next_free_vgpr %d
  .amdhsa_next_free_sgpr %d
  .amdhsa_accum_offset %d
  .amdhsa_group_segment_fixed_size 0
  .amdhsa_kernarg_size 104
  .amdhsa_user_sgpr_count 2
  .amdhsa_user_sgpr_kernarg_segment_ptr 1
  .amdhsa_system_sgpr_workgroup_id_x 1
.end_amdhsa_kernel
""" % (name, vgpr, sgpr, acc)


KPRE = 5
KLATE = False
QBAR = False
KPACE = 2
VP = 16
NOSYNC = False
QSLEEP0 = 100
QSLEEP1 = 16


def main():
    global STAMPS, KPRE, KLATE, NT, QBAR, KPACE, VP, NOSYNC, QSLEEP0, QSLEEP1
    outf = OUT
    for a in sys.argv[1:]:
        if a == "stamps":
            STAMPS = True
        elif a.startswith("out="):
            outf = a[4:]
        elif a.startswith("kpre="):
            KPRE = int(a[5:])
        elif a == "klate":
            KLATE = True
        elif a.startswith("kpace="):
            KPACE = int(a[6:])
        elif a.startswith("qs0="):
            QSLEEP0 = int(a[4:])
        elif a.startswith("qs1="):
            QSLEEP1 = int(a[4:])
        elif a == "nosync":
            NOSYNC = True
        elif a.startswith("vp="):
            VP = int(a[3:])
        elif a == "qbar":
            QBAR = True
        elif a == "nont":
            NT = ""
    ref = open(OUT + ".ref").read().splitlines()
    head = []
    for ln in ref:
        if ln.startswith(";") and "@launch" not in ln:
            head.append(ln)
        elif ln.startswith(";"):
            continue
        else:
            break
    e1 = Emit()
    fused_kernel(e1)
    txt = "\n".join(head) + "\n"
    txt += "; @launch grid=(256,1,1) block=(512,1,1) lds=%d\n" % FUSED_LDS
    txt += '.amdgcn_target "amdgcn-amd-amdhsa--gfx950"\n.text\n'
    txt += e1.text()
    txt += '.section .rodata,"a"\n'
    txt += descriptor(KNAME, 256)
    open(outf, "w").write(txt)


if __name__ == "__main__":
    main()
```

```python
import struct
import sys

sys.path.insert(0, "gen")
from emit import Emit

OUT = "gated_mix__gqa_block_cached__glu_gated_bilinear__decode.s"


def f32(x):
    return "0x%08x" % struct.unpack("<I", struct.pack("<f", x))[0]


LOG2E = 1.4426950408889634
SCALE = 192 ** -0.5

KV_BYTES = 100663296
WQ_BYTES = 640 * 6144 * 2
WO_BYTES = 6144 * 640 * 2
WG_BYTES = 640 * 1536 * 2
WD_BYTES = 1536 * 640 * 2
WS_BYTES = 402653184
PART_OFF = 0x100000

S_K, S_V, S_WQ, S_X, S_WG, S_WU, S_WS, S_WO, S_WD, S_GW, S_OUT, S_DBG = (
    32, 36, 40, 44, 48, 52, 56, 60, 64, 68, 72, 76)
S_H, S_S, S_W = 80, 81, 82
S_MASK = 89

NT = " nt"
STAMPS = False
STAMP_OFF = 0x800000


STAMP_REGS = [92, 94, 96, 98, 100, 4, 6, 8, 10, 12, 14, 16, 18, 20, 22, 24, 26]


def stamp(e, n):
    if STAMPS:
        e.i("s_memrealtime s[%d:%d]" % (STAMP_REGS[n], STAMP_REGS[n] + 1))


def stamp_store(e, nst, kidx, va=250, vb=251):
    if not STAMPS:
        return
    e.i("s_waitcnt lgkmcnt(0)")
    e.i("s_lshl_b32 s90, s2, 3")
    e.i("s_add_u32 s90, s90, s%d" % S_W)
    e.i("s_lshl_b32 s90, s90, 7")
    e.i("s_add_u32 s90, s90, %d" % (STAMP_OFF + kidx * 0x100000))
    e.i("s_mov_b64 exec, 1")
    e.i("v_mov_b32 v%d, 0" % va)
    for n in range(nst):
        e.i("v_mov_b32 v%d, s%d" % (vb, STAMP_REGS[n]))
        e.i("buffer_store_dword v%d, v%d, %s, s90 offen offset:%d" % (vb, va, S4(S_WS), 4 * n))
    e.i("s_mov_b64 exec, -1")


def srd(e, base, ptr, nbytes):
    e.i("s_mov_b32 s%d, s%d" % (base, ptr))
    e.i("s_and_b32 s%d, s%d, 0xffff" % (base + 1, ptr + 1))
    e.i("s_mov_b32 s%d, %d" % (base + 2, nbytes))
    e.i("s_mov_b32 s%d, 0x00020000" % (base + 3))


def R(a, n):
    return "v[%d:%d]" % (a, a + n - 1)


def S4(a):
    return "s[%d:%d]" % (a, a + 3)


def common_prologue(e, exit_label):
    e.i("s_cmp_ge_u32 s2, 256")
    e.i("s_cbranch_scc1 %s" % exit_label)
    e.i("s_load_dwordx16 s[4:19], s[0:1], 0")
    e.i("s_load_dwordx8 s[20:27], s[0:1], 64")
    e.i("s_load_dwordx2 s[28:29], s[0:1], 96")
    e.i("v_and_b32 v1, 63, v0")
    e.i("v_lshrrev_b32 v4, 6, v0")
    e.i("v_readfirstlane_b32 s%d, v4" % S_W)
    e.i("s_and_b32 s%d, s2, 7" % S_H)
    e.i("s_lshl_b32 s%d, s%d, 2" % (S_H, S_H))
    e.i("s_lshr_b32 s%d, s2, 3" % S_S)
    e.i("s_and_b32 s83, s%d, 3" % S_S)
    e.i("s_add_u32 s%d, s%d, s83" % (S_H, S_H))
    e.i("s_lshr_b32 s%d, s2, 5" % S_S)
    e.i("s_mov_b32 s%d, 0xffff0000" % S_MASK)


def dpp_full_reduce(e, regs):
    for mod in ("row_shr:1 row_mask:0xf bank_mask:0xf bound_ctrl:0",
                "row_shr:2 row_mask:0xf bank_mask:0xf bound_ctrl:0",
                "row_shr:4 row_mask:0xf bank_mask:0xf bound_ctrl:0",
                "row_shr:8 row_mask:0xf bank_mask:0xf bound_ctrl:0",
                "row_bcast:15 row_mask:0xa bank_mask:0xf",
                "row_bcast:31 row_mask:0xc bank_mask:0xf"):
        for r in regs:
            e.i("v_add_f32_dpp v%d, v%d, v%d %s" % (r, r, r, mod))


def reduce24(e, acc):
    for i in range(12):
        e.i("v_permlane32_swap_b32 v%d, v%d" % (acc + 2 * i, acc + 2 * i + 1))
    for i in range(12):
        e.i("v_add_f32 v%d, v%d, v%d" % (acc + 2 * i, acc + 2 * i, acc + 2 * i + 1))
    for k in range(6):
        e.i("v_permlane16_swap_b32 v%d, v%d" % (acc + 4 * k, acc + 4 * k + 2))
    for k in range(6):
        e.i("v_add_f32 v%d, v%d, v%d" % (acc + 4 * k, acc + 4 * k, acc + 4 * k + 2))
    for k in range(6):
        e.i("v_add_f32_dpp v%d, v%d, v%d row_ror:8 row_mask:0xf bank_mask:0xf" % (acc + 4 * k, acc + 4 * k, acc + 4 * k))


def fma_slot(e, base, acc, coef, temps):
    nt = len(temps)
    for k in range(12):
        t0 = temps[(2 * k) % nt]
        t1 = temps[(2 * k + 1) % nt]
        e.i("v_lshlrev_b32 v%d, 16, v%d" % (t0, base + k))
        e.i("v_and_b32 v%d, s%d, v%d" % (t1, S_MASK, base + k))
        e.i("v_fmac_f32 v%d, v%d, v%d" % (acc + 2 * k, coef, t0))
        e.i("v_fmac_f32 v%d, v%d, v%d" % (acc + 2 * k + 1, coef, t1))


def bf16_round_pair(e, a, b, t):
    e.i("v_cvt_pk_bf16_f32 v%d, v%d, v%d" % (t, a, b))
    e.i("v_lshlrev_b32 v%d, 16, v%d" % (a, t))
    e.i("v_and_b32 v%d, s%d, v%d" % (b, S_MASK, t))


def bf16_round(e, a, t):
    e.i("v_cvt_pk_bf16_f32 v%d, v%d, v%d" % (t, a, a))
    e.i("v_lshlrev_b32 v%d, 16, v%d" % (a, t))


L_RED = 0
L_FFN = 6144
L_QB = 9216
L_ML = 9600
MAIN_LDS = 10240

ACC = 8
QR = 32
SC = 44
SLOT0 = 64


def slot(t):
    return SLOT0 + 12 * t


def kv_loads(e, srdbase, t, tagp):
    e.i("s_add_u32 s88, s87, %d" % (t * 3072))
    for j in range(3):
        e.i("buffer_load_dwordx4 %s, v2, %s, s88 offen offset:%d%s" % (R(slot(t) + 4 * j, 4), S4(srdbase), j * 128, NT),
            tag=(tagp, t, j))


FLAG_OFF = 0x200000
REC2_OFF = 0x80000
QREC_OFF = 0x300000
KNAME = "gated_mix__gqa_block_cached__glu_gated_bilinear__decode_kernel"

T_O = 10240
T_PA = T_O + 1024
T_PB = T_PA + 15360
T_FIN = T_PB + 15360
T_FLAG = T_FIN + 1024
FUSED_LDS = T_FLAG + 64


def fused_kernel(e):
    name = KNAME
    e.raw(".globl %s" % name)
    e.raw(".p2align 8")
    e.raw(".type %s,@function" % name)
    e.raw("%s:" % name)
    common_prologue(e, "L_exit")
    e.i("v_lshrrev_b32 v4, 3, v1")
    e.i("v_and_b32 v5, 7, v1")
    e.i("v_lshlrev_b32 v5, 4, v5")
    e.i("v_mul_u32_u24 v2, 0x180, v4")
    e.i("v_add_u32 v2, v2, v5")
    e.i("v_mul_u32_u24 v3, 12288, v4")
    e.i("v_add_u32 v3, v3, v5")
    e.i("v_mul_u32_u24 v7, 3072, v4")
    e.i("v_add_u32 v7, v7, v5")
    e.i("v_lshlrev_b32 v55, 1, v4")
    for r in list(range(32, 48)) + [54, 60] + [slot(15) + r for r in range(12)]:
        e.i("v_mov_b32 v%d, 0" % r)
    e.i("s_mul_i32 s86, s%d, 80" % S_S)
    e.i("s_mul_i32 s83, s%d, 10" % S_W)
    e.i("s_add_u32 s86, s86, s83")
    e.i("s_lshl_b32 s88, s86, 1")
    e.i("s_mul_i32 s85, s86, 12288")
    e.i("s_mul_i32 s83, s%d, 384" % S_H)
    e.i("s_add_u32 s85, s85, s83")
    e.i("s_add_u32 s84, s85, %d" % (8 * 12288))
    e.i("s_mul_i32 s86, s86, 3072")
    e.i("s_mul_i32 s83, s%d, 96" % S_H)
    e.i("s_add_u32 s86, s86, s83")
    e.i("s_add_u32 s90, s86, %d" % (8 * 3072))
    e.i("s_mul_i32 s87, s%d, %d" % (S_H, 8192 * 384))
    e.i("s_mul_i32 s83, s%d, %d" % (S_S, 1024 * 384))
    e.i("s_add_u32 s87, s87, s83")
    e.i("s_mul_i32 s83, s%d, %d" % (S_W, 128 * 384))
    e.i("s_add_u32 s87, s87, s83")
    e.i("s_lshl_b32 s91, s%d, 8" % S_H)
    e.i("s_lshl_b32 s83, s%d, 2" % S_S)
    e.i("s_add_u32 s91, s91, s83")
    e.i("s_add_u32 s3, s91, %d" % FLAG_OFF)
    e.i("s_waitcnt lgkmcnt(0)")
    stamp(e, 0)
    srd(e, S_X, 4, 1280)
    srd(e, S_WG, 16, WG_BYTES)
    srd(e, S_WU, 18, WG_BYTES)
    srd(e, S_WQ, 10, WQ_BYTES)
    srd(e, S_K, 6, KV_BYTES)
    srd(e, S_WS, 28, WS_BYTES)
    if NOW and "q" in NOW:
        for r in (84, 85):
            e.i("s_mov_b32 s%d, 0" % r)
        e.i("v_and_b32 v3, 0xfff, v3")
    if NOW and "f" in NOW:
        for r in (86, 90):
            e.i("s_mov_b32 s%d, 0" % r)
        e.i("v_and_b32 v7, 0xfff, v7")
    e.i("buffer_load_ushort v53, v55, %s, s88 offen" % S4(S_X), tag="xa")
    for j in range(3):
        e.i("buffer_load_dwordx4 %s, v3, %s, s85 offen offset:%d" % (R(slot(14) + 4 * j, 4), S4(S_WQ), j * 128), tag=("wq", 0, j))
    e.i("s_mov_b32 exec_lo, 0x3f3f3f3f")
    e.i("s_mov_b32 exec_hi, 0x3f3f3f3f")
    e.i("buffer_load_dwordx4 v[32:35], v7, %s, s86 offen" % S4(S_WG), tag="ga")
    e.i("buffer_load_dwordx4 v[40:43], v7, %s, s86 offen" % S4(S_WU), tag="ua")
    e.i("s_mov_b64 exec, 0x3f3f")
    e.i("buffer_load_dwordx4 v[36:39], v7, %s, s90 offen" % S4(S_WG), tag="gb")
    e.i("buffer_load_dwordx4 v[44:47], v7, %s, s90 offen" % S4(S_WU), tag="ub")
    e.i("s_mov_b64 exec, 0xffff")
    e.i("buffer_load_ushort v54, v55, %s, s88 offen offset:16" % S4(S_X), tag="xb")
    for j in range(3):
        e.i("buffer_load_dwordx4 %s, v3, %s, s84 offen offset:%d" % (R(slot(15) + 4 * j, 4), S4(S_WQ), j * 128), tag=("wq", 1, j))
    e.i("s_mov_b64 exec, -1")
    srd(e, S_V, 8, KV_BYTES)
    srd(e, S_GW, 22, 1280)
    srd(e, S_WO, 12, WO_BYTES)
    srd(e, S_WD, 20, WD_BYTES)
    srd(e, S_OUT, 24, 1280)
    srd(e, S_DBG, 26, 256)
    e.i("s_cmp_eq_u32 s%d, 0" % S_W)
    e.i("s_cbranch_scc1 L_nokpre")
    save = (e.vm_issued, e.vm_done)
    for t in range(KPRE):
        kv_loads(e, S_K, t, "k")
    e.label("L_nokpre")
    e.i("s_nop 3")
    FA = [slot(13) + r for r in range(12)] + [56, 57, 58, 59]
    e.i("s_cmp_eq_u32 s%d, 0" % S_W)
    e.i("s_cbranch_scc0 L_w17")
    e.i("s_waitcnt vmcnt(0)")
    e.label("L_w17")
    e.i("s_nop 3")
    e.wait_vm(("wq", 1, 2))
    stamp(e, 11)
    e.i("v_lshlrev_b32 v53, 16, v53")
    e.i("v_lshlrev_b32 v54, 16, v54")
    for m, (ra, rb) in enumerate(((32, 36), (40, 44))):
        for k in range(4):
            e.i("v_lshlrev_b32 v60, 16, v%d" % (ra + k))
            e.i("v_and_b32 v61, s%d, v%d" % (S_MASK, ra + k))
            e.i("v_lshlrev_b32 v62, 16, v%d" % (rb + k))
            e.i("v_and_b32 v63, s%d, v%d" % (S_MASK, rb + k))
            e.i("v_mul_f32 v%d, v53, v60" % FA[m * 8 + 2 * k])
            e.i("v_mul_f32 v%d, v53, v61" % FA[m * 8 + 2 * k + 1])
            e.i("v_fmac_f32 v%d, v54, v62" % FA[m * 8 + 2 * k])
            e.i("v_fmac_f32 v%d, v54, v63" % FA[m * 8 + 2 * k + 1])
    for k in range(12):
        e.i("v_lshlrev_b32 v60, 16, v%d" % (slot(14) + k))
        e.i("v_and_b32 v61, s%d, v%d" % (S_MASK, slot(14) + k))
        e.i("v_lshlrev_b32 v62, 16, v%d" % (slot(15) + k))
        e.i("v_and_b32 v63, s%d, v%d" % (S_MASK, slot(15) + k))
        e.i("v_mul_f32 v%d, v53, v60" % (ACC + 2 * k))
        e.i("v_mul_f32 v%d, v53, v61" % (ACC + 2 * k + 1))
        e.i("v_fmac_f32 v%d, v54, v62" % (ACC + 2 * k))
        e.i("v_fmac_f32 v%d, v54, v63" % (ACC + 2 * k + 1))
    for i in range(8):
        e.i("v_permlane32_swap_b32 v%d, v%d" % (FA[2 * i], FA[2 * i + 1]))
    for i in range(8):
        e.i("v_add_f32 v%d, v%d, v%d" % (FA[2 * i], FA[2 * i], FA[2 * i + 1]))
    for k in range(4):
        e.i("v_permlane16_swap_b32 v%d, v%d" % (FA[4 * k], FA[4 * k + 2]))
    for k in range(4):
        e.i("v_add_f32 v%d, v%d, v%d" % (FA[4 * k], FA[4 * k], FA[4 * k + 2]))
    for k in range(4):
        e.i("v_add_f32_dpp v%d, v%d, v%d row_ror:8 row_mask:0xf bank_mask:0xf" % (FA[4 * k], FA[4 * k], FA[4 * k]))
    reduce24(e, ACC)
    e.i("v_and_b32 v4, 7, v1")
    e.i("v_lshlrev_b32 v4, 5, v4")
    e.i("v_bfe_u32 v5, v1, 4, 1")
    e.i("v_lshlrev_b32 v5, 3, v5")
    e.i("v_add_u32 v4, v4, v5")
    e.i("v_bfe_u32 v5, v1, 5, 1")
    e.i("v_lshlrev_b32 v5, 2, v5")
    e.i("v_add_u32 v7, v4, v5")
    e.i("s_mul_i32 s90, s%d, 384" % S_W)
    e.i("v_add_u32 v60, s90, v7")
    e.i("s_mul_i32 s90, s%d, 768" % S_W)
    e.i("v_add_u32 v7, s90, v7")
    for k in range(6):
        e.i("ds_write_b32 v7, v%d offset:%d" % (ACC + 4 * k, (k >> 1) * 256 + (k & 1) * 16))
    e.i("s_mov_b32 exec_lo, 0x3f3f3f3f")
    e.i("s_mov_b32 exec_hi, 0x3f3f3f3f")
    for k in range(4):
        e.i("ds_write_b32 v60, v%d offset:%d" % (FA[4 * k], L_FFN + (k >> 1) * 192 + (k & 1) * 16))
    e.i("s_mov_b64 exec, -1")
    e.i("s_waitcnt lgkmcnt(0)")
    e.i("s_barrier")
    e.i("s_cmp_eq_u32 s%d, 0" % S_W)
    e.i("s_cbranch_scc1 L_sync0")
    done_b1 = e.vm_done
    for t in range(KPRE, 16):
        if t >= KPACE:
            e.wait_vm(("k", t - KPACE, 2))
        kv_loads(e, S_K, t, "k")
    e.i("s_branch L_q_join")
    e.label("L_sync0")
    e.i("s_nop 3")
    after = (e.vm_issued, done_b1, dict(e.tagpos))
    if NOSYNC:
        e.i("s_branch L_q_join")
    e.i("v_lshlrev_b32 v4, 2, v1")
    for w in range(8):
        for i in range(3):
            e.i("ds_read_b32 v%d, v4 offset:%d" % (64 + 8 * i + w, w * 768 + i * 256))
        e.i("ds_read_b32 v%d, v4 offset:%d" % (88 + w, L_FFN + w * 384))
        e.i("ds_read_b32 v%d, v4 offset:%d" % (96 + w, L_FFN + w * 384 + 192))
    e.i("s_waitcnt lgkmcnt(0)")
    for o in (64, 72, 80, 88, 96):
        for a, b in ((0, 1), (2, 3), (4, 5), (6, 7), (0, 2), (4, 6), (0, 4)):
            e.i("v_add_f32 v%d, v%d, v%d" % (o + a, o + a, o + b))
    e.i("s_lshl_b32 s90, s%d, 3" % S_H)
    e.i("s_add_u32 s90, s90, s%d" % S_S)
    e.i("s_lshl_b32 s83, s90, 10")
    e.i("s_add_u32 s83, s83, %d" % QREC_OFF)
    for i in range(3):
        e.i("buffer_store_dword v%d, v4, %s, s83 offen offset:%d sc0 sc1" % (64 + 8 * i, S4(S_WS), i * 256))
    e.i("s_lshl_b32 s90, s90, 9")
    e.i("s_add_u32 s90, s90, %d" % REC2_OFF)
    e.i("s_mov_b32 exec_hi, 0xffff")
    e.i("buffer_store_dword v88, v4, %s, s90 offen sc0 sc1" % S4(S_WS))
    e.i("buffer_store_dword v96, v4, %s, s90 offen offset:192 sc0 sc1" % S4(S_WS))
    e.i("s_mov_b64 exec, 1")
    e.i("v_mov_b32 v60, 0")
    e.i("buffer_store_dword v60, v60, %s, s3 offen sc0 sc1" % S4(S_WS))
    e.i("s_waitcnt vmcnt(0)")
    e.i("v_mov_b32 v56, 1")
    e.i("s_lshl_b32 s90, s%d, 2" % S_H)
    e.i("v_mov_b32 v57, s90")
    e.i("buffer_atomic_add v56, v57, %s, 0 offen sc1" % S4(S_DBG))
    e.i("s_mov_b64 exec, -1")
    e.i("v_mov_b32 v57, s90")
    stamp(e, 12)
    e.i("s_mov_b32 s83, 0")
    e.i("s_sleep %d" % QSLEEP0)
    e.label("L_qpoll")
    e.i("s_nop 3")
    e.i("buffer_load_dword v56, v57, %s, 0 offen sc0 sc1" % S4(S_DBG))
    e.i("s_waitcnt vmcnt(0)")
    e.i("v_readfirstlane_b32 s90, v56")
    e.i("s_cmp_ge_u32 s90, 8")
    e.i("s_cbranch_scc1 L_qready")
    e.i("s_add_u32 s83, s83, 1")
    e.i("s_cmp_ge_u32 s83, 0x400000")
    e.i("s_cbranch_scc1 L_qready")
    e.i("s_sleep %d" % QSLEEP1)
    e.i("s_branch L_qpoll")
    e.label("L_qready")
    e.i("s_nop 3")
    stamp(e, 13)
    e.i("s_lshl_b32 s83, s%d, 13" % S_H)
    e.i("s_add_u32 s83, s83, %d" % QREC_OFF)
    for sp in range(8):
        for i in range(3):
            e.i("buffer_load_dword v%d, v4, %s, s83 offen offset:%d sc0 sc1" % (64 + 8 * i + sp, S4(S_WS), i * 256))
        if sp < 7:
            e.i("s_add_u32 s83, s83, 1024")
    e.i("s_waitcnt vmcnt(0)")
    for o in (64, 72, 80):
        for a, b in ((0, 1), (2, 3), (4, 5), (6, 7), (0, 2), (4, 6), (0, 4)):
            e.i("v_add_f32 v%d, v%d, v%d" % (o + a, o + a, o + b))
    e.i("v_lshlrev_b32 v4, 1, v1")
    for i in range(3):
        e.i("v_cvt_pk_bf16_f32 v%d, v%d, v%d" % (64 + 8 * i, 64 + 8 * i, 64 + 8 * i))
    for i in range(3):
        e.i("ds_write_b16 v4, v%d offset:%d" % (64 + 8 * i, L_QB + i * 128))
    e.i("s_waitcnt lgkmcnt(0)")
    stamp(e, 14)
    e.label("L_q_join")
    e.i("s_nop 3")
    e.i("s_barrier")
    e.i("s_cmp_eq_u32 s%d, 0" % S_W)
    e.i("s_cbranch_scc0 L_k0done")
    for t in range(16):
        kv_loads(e, S_K, t, "kk")
    e.label("L_k0done")
    e.i("s_nop 3")
    e.vm_issued, e.vm_done, e.tagpos = after
    e.i("v_and_b32 v4, 7, v1")
    e.i("v_lshlrev_b32 v4, 4, v4")
    for j in range(3):
        e.i("ds_read_b128 %s, v4 offset:%d" % (R(QR + 4 * j, 4), L_QB + j * 128))
    e.i("s_waitcnt lgkmcnt(0)")
    stamp(e, 1)
    chains = ((4, 5, 6), (60, 61, 62))
    for t in range(16):
        c = chains[t & 1]
        for j in range(3):
            e.i("v_mov_b32 v%d, 0" % c[j])
        for j in range(3):
            e.wait_vm(("k", t, j))
            for r in range(4):
                e.i("v_dot2c_f32_bf16 v%d, v%d, v%d" % (c[j], slot(t) + 4 * j + r, QR + 4 * j + r))
        if t < VP:
            kv_loads(e, S_V, t, "v")
        if t:
            p = chains[(t - 1) & 1]
            e.i("v_add_f32 v%d, v%d, v%d" % (SC + t - 1, p[0], p[1]))
            e.i("v_add_f32 v%d, v%d, v%d" % (SC + t - 1, SC + t - 1, p[2]))
    stamp(e, 2)
    p = chains[1]
    e.i("v_add_f32 v%d, v%d, v%d" % (SC + 15, p[0], p[1]))
    e.i("v_add_f32 v%d, v%d, v%d" % (SC + 15, SC + 15, p[2]))
    for mod in ("quad_perm:[1,0,3,2]", "quad_perm:[2,3,0,1]", "row_half_mirror"):
        for t in range(16):
            e.i("v_add_f32_dpp v%d, v%d, v%d %s row_mask:0xf bank_mask:0xf" % (SC + t, SC + t, SC + t, mod))
    e.i("s_mov_b32 s90, %s" % f32(SCALE))
    for t in range(0, 16, 2):
        bf16_round_pair(e, SC + t, SC + t + 1, 32 + (t >> 1))
    for t in range(16):
        e.i("v_mul_f32 v%d, s90, v%d" % (SC + t, SC + t))
    for t in range(0, 16, 2):
        bf16_round_pair(e, SC + t, SC + t + 1, 32 + (t >> 1))
    e.i("v_max3_f32 v32, v%d, v%d, v%d" % (SC, SC + 1, SC + 2))
    e.i("v_max3_f32 v33, v%d, v%d, v%d" % (SC + 3, SC + 4, SC + 5))
    e.i("v_max3_f32 v34, v%d, v%d, v%d" % (SC + 6, SC + 7, SC + 8))
    e.i("v_max3_f32 v35, v%d, v%d, v%d" % (SC + 9, SC + 10, SC + 11))
    e.i("v_max3_f32 v36, v%d, v%d, v%d" % (SC + 12, SC + 13, SC + 14))
    e.i("v_max3_f32 v32, v32, v33, v%d" % (SC + 15))
    e.i("v_max3_f32 v34, v34, v35, v36")
    e.i("v_max_f32 v32, v32, v34")
    e.i("v_max_f32_dpp v32, v32, v32 row_ror:8 row_mask:0xf bank_mask:0xf")
    e.i("v_mov_b32 v33, v32")
    e.i("v_permlane16_swap_b32 v32, v33")
    e.i("v_max_f32 v32, v32, v33")
    e.i("v_mov_b32 v33, v32")
    e.i("v_permlane32_swap_b32 v32, v33")
    e.i("v_max_f32 v6, v32, v33")
    e.i("s_mov_b32 s90, %s" % f32(LOG2E))
    e.i("v_mul_f32 v33, s90, v6")
    for t in range(16):
        e.i("v_fma_f32 v%d, v%d, s90, -v33" % (SC + t, SC + t))
    for t in range(16):
        e.i("v_exp_f32 v%d, v%d" % (SC + t, SC + t))
    e.i("v_add_f32 v32, v%d, v%d" % (SC, SC + 1))
    e.i("v_add_f32 v33, v%d, v%d" % (SC + 2, SC + 3))
    for t in range(4, 16, 2):
        e.i("v_add_f32 v32, v32, v%d" % (SC + t))
        e.i("v_add_f32 v33, v33, v%d" % (SC + t + 1))
    e.i("v_add_f32 v5, v32, v33")
    for r in range(24):
        e.i("v_mov_b32 v%d, 0" % (ACC + r))
    e.i("v_mul_u32_u24 v60, 205, v1")
    e.i("v_lshrrev_b32 v60, 11, v60")
    e.i("v_mul_u32_u24 v61, 10, v60")
    e.i("v_sub_u32 v61, v1, v61")
    e.i("v_mul_u32_u24 v62, 1280, v60")
    e.i("v_lshlrev_b32 v63, 4, v61")
    e.i("v_add_u32 v62, v62, v63")
    e.i("v_mul_u32_u24 v3, 20, v1")
    e.i("s_mul_i32 s84, s%d, 192" % S_H)
    e.i("s_mul_i32 s83, s%d, 24" % S_W)
    e.i("s_add_u32 s84, s84, s83")
    e.i("s_mul_i32 s84, s84, 1280")
    e.i("s_mul_i32 s83, s%d, 160" % S_S)
    e.i("s_add_u32 s84, s84, s83")
    e.i("s_mul_i32 s85, s%d, 48" % S_H)
    e.i("s_mul_i32 s86, s%d, 6" % S_W)
    e.i("s_add_u32 s85, s85, s86")
    e.i("s_mul_i32 s85, s85, 1280")
    e.i("s_add_u32 s85, s85, s83")
    if NOW and "t" in NOW:
        e.i("s_mov_b32 s84, 0")
        e.i("s_mov_b32 s85, 0")
    vt = list(range(32, 40))
    for t in range(16):
        e.wait_vm(("v", t, 2))
        if t + VP < 16:
            kv_loads(e, S_V, t + VP, "v")
        fma_slot(e, slot(t), ACC, SC + t, vt)
        if t == 1:
            e.i("s_mov_b32 exec_hi, 0x0fffffff")
            for i in range(4):
                e.i("buffer_load_dwordx4 %s, v62, %s, s84 offen" % (R(64 + 4 * i, 4), S4(S_WO)), tag=("wo", i))
                if i < 3:
                    e.i("s_add_u32 s84, s84, %d" % (6 * 1280))
            e.i("buffer_load_dwordx4 %s, v62, %s, s85 offen" % (R(80, 4), S4(S_WD)), tag="wd")
            e.i("s_mov_b64 exec, -1")
        if t == 3:
            e.i("buffer_load_dwordx4 v[88:91], v3, %s, 0 offen" % S4(S_X), tag="gx0")
            e.i("buffer_load_dword v92, v3, %s, 0 offen offset:16" % S4(S_X), tag="gx1")
            e.i("buffer_load_dwordx4 v[96:99], v3, %s, 0 offen" % S4(S_GW), tag="gw0")
            e.i("buffer_load_dword v100, v3, %s, 0 offen offset:16" % S4(S_GW), tag="gw1")
            e.i("s_lshl_b32 s90, s%d, 2" % S_H)
            e.i("v_mov_b32 v101, s90")
            e.i("buffer_load_dword v102, v101, %s, 0 offen sc0 sc1" % S4(S_DBG), tag="cnt")
    stamp(e, 3)
    e.wait_vm("cnt")
    for k in range(5):
        e.i("v_lshlrev_b32 v44, 16, v%d" % (88 + k))
        e.i("v_and_b32 v45, s%d, v%d" % (S_MASK, 88 + k))
        e.i("v_lshlrev_b32 v46, 16, v%d" % (96 + k))
        e.i("v_and_b32 v47, s%d, v%d" % (S_MASK, 96 + k))
        e.i("v_mul_f32 v44, v44, v46")
        e.i("v_mul_f32 v45, v45, v47")
        bf16_round_pair(e, 44, 45, 46)
        if k == 0:
            e.i("v_add_f32 v48, v44, v45")
        else:
            e.i("v_add_f32 v48, v48, v44")
            e.i("v_add_f32 v48, v48, v45")
    reduce24(e, ACC)
    for k in range(6):
        e.i("ds_write_b32 v7, v%d offset:%d" % (ACC + 4 * k, (k >> 1) * 256 + (k & 1) * 16))
    dpp_full_reduce(e, [5, 48])
    e.i("s_mov_b32 s90, 0x3e000000")
    e.i("v_mul_f32 v5, s90, v5")
    e.i("s_lshl_b32 s90, s%d, 3" % S_W)
    e.i("s_add_u32 s90, s90, %d" % L_ML)
    e.i("v_mov_b32 v63, s90")
    e.i("v_mov_b32 v4, v6")
    e.i("s_mov_b32 exec_lo, 0")
    e.i("s_mov_b32 exec_hi, 0x80000000")
    e.i("ds_write_b64 v63, v[4:5]")
    e.i("s_mov_b64 exec, -1")
    bf16_round(e, 48, 44)
    e.i("s_mov_b32 s90, %s" % f32(LOG2E))
    e.i("v_mul_f32 v48, s90, v48")
    e.i("v_exp_f32 v48, -v48")
    e.i("v_add_f32 v48, 1.0, v48")
    e.i("v_rcp_f32 v48, v48")
    bf16_round(e, 48, 44)
    e.i("v_readlane_b32 s91, v48, 63")
    e.i("v_lshlrev_b32 v7, 2, v0")
    e.i("s_waitcnt lgkmcnt(0)")
    e.i("s_barrier")
    stamp(e, 4)
    e.i("s_lshl_b32 s86, s%d, 13" % S_H)
    e.i("s_cmp_ge_u32 s%d, 3" % S_W)
    e.i("s_cbranch_scc1 L_pub")
    e.i("v_mov_b32 v4, %d" % L_ML)
    for r in range(4):
        e.i("ds_read_b128 %s, v4 offset:%d" % (R(104 + 4 * r, 4), 16 * r))
    for w in range(8):
        e.i("ds_read_b32 v%d, v7 offset:%d" % (120 + w, w * 768))
    e.i("s_waitcnt lgkmcnt(0)")
    e.i("v_max3_f32 v128, v104, v106, v108")
    e.i("v_max3_f32 v129, v110, v112, v114")
    e.i("v_max3_f32 v128, v128, v116, v118")
    e.i("v_max_f32 v128, v128, v129")
    for w in range(8):
        e.i("v_sub_f32 v%d, v%d, v128" % (132 + w, 104 + 2 * w))
    for w in range(8):
        e.i("v_mul_f32 v%d, s90, v%d" % (132 + w, 132 + w))
    for w in range(8):
        e.i("v_exp_f32 v%d, v%d" % (132 + w, 132 + w))
    e.i("v_mul_f32 v130, v132, v120")
    e.i("v_mul_f32 v129, v132, v105")
    for w in range(1, 8):
        e.i("v_fmac_f32 v130, v%d, v%d" % (132 + w, 120 + w))
        e.i("v_fmac_f32 v129, v%d, v%d" % (132 + w, 105 + 2 * w))
    e.i("s_lshl_b32 s83, s%d, 10" % S_S)
    e.i("s_add_u32 s83, s83, s86")
    e.i("buffer_store_dword v130, v7, %s, s83 offen sc0 sc1" % S4(S_WS))
    e.i("s_cmp_lg_u32 s%d, 0" % S_W)
    e.i("s_cbranch_scc1 L_pub")
    e.i("s_mov_b64 exec, 1")
    e.i("buffer_store_dwordx2 v[128:129], v7, %s, s83 offen offset:768 sc0 sc1" % S4(S_WS))
    e.i("s_mov_b64 exec, -1")
    e.label("L_pub")
    e.i("s_nop 3")
    e.wait_vm_all()
    e.i("s_barrier")
    e.i("s_cmp_lg_u32 s%d, 0" % S_W)
    e.i("s_cbranch_scc1 L_polled")
    e.i("v_mov_b32 v104, 1")
    e.i("v_mov_b32 v105, 0")
    e.i("s_mov_b64 exec, 1")
    e.i("buffer_store_dword v104, v105, %s, s3 offen sc0 sc1" % S4(S_WS))
    e.i("s_mov_b64 exec, -1")
    stamp(e, 5)
    e.i("s_mov_b32 s83, 0")
    e.label("L_poll1")
    e.i("s_nop 3")
    e.i("v_readfirstlane_b32 s90, v102")
    e.i("s_cmp_ge_u32 s90, 8")
    e.i("s_cbranch_scc1 L_poll2")
    e.i("s_add_u32 s83, s83, 1")
    e.i("s_cmp_ge_u32 s83, 0x400000")
    e.i("s_cbranch_scc1 L_poll2")
    e.i("s_sleep 2")
    e.i("buffer_load_dword v102, v101, %s, 0 offen sc0 sc1" % S4(S_DBG))
    e.i("s_waitcnt vmcnt(0)")
    e.i("s_branch L_poll1")
    e.label("L_poll2")
    e.i("s_nop 3")
    e.i("s_andn2_b32 s90, s3, 0xff")
    e.i("v_and_b32 v105, 7, v1")
    e.i("v_lshlrev_b32 v105, 2, v105")
    e.label("L_poll3")
    e.i("s_nop 3")
    e.i("buffer_load_dword v104, v105, %s, s90 offen sc0 sc1" % S4(S_WS))
    e.i("s_waitcnt vmcnt(0)")
    e.i("v_cmp_ne_u32 vcc, 1, v104")
    e.i("s_cmp_eq_u64 vcc, 0")
    e.i("s_cbranch_scc1 L_polled")
    e.i("s_add_u32 s83, s83, 1")
    e.i("s_cmp_ge_u32 s83, 0x400000")
    e.i("s_cbranch_scc1 L_polled")
    e.i("s_sleep 1")
    e.i("s_branch L_poll3")
    e.label("L_polled")
    e.i("s_nop 3")
    e.i("s_barrier")
    stamp(e, 6)
    e.i("s_cmp_ge_u32 s%d, 3" % S_W)
    e.i("s_cbranch_scc1 L_rec_h")
    e.i("v_mov_b32 v8, 768")
    for s in range(8):
        e.i("s_add_u32 s87, s86, %d" % (s * 1024))
        e.i("buffer_load_dwordx2 %s, v8, %s, s87 offen sc0 sc1" % (R(104 + 2 * s, 2), S4(S_WS)))
        e.i("buffer_load_dword v%d, v7, %s, s87 offen sc0 sc1" % (120 + s, S4(S_WS)))
    e.i("s_waitcnt vmcnt(0)")
    e.i("v_max3_f32 v30, v104, v106, v108")
    e.i("v_max3_f32 v31, v110, v112, v114")
    e.i("v_max3_f32 v30, v30, v116, v118")
    e.i("v_max_f32 v30, v30, v31")
    e.i("s_mov_b32 s90, %s" % f32(LOG2E))
    for s in range(8):
        e.i("v_sub_f32 v%d, v%d, v30" % (32 + s, 104 + 2 * s))
    for s in range(8):
        e.i("v_mul_f32 v%d, s90, v%d" % (32 + s, 32 + s))
    for s in range(8):
        e.i("v_exp_f32 v%d, v%d" % (32 + s, 32 + s))
    e.i("v_mul_f32 v40, v32, v120")
    e.i("v_mul_f32 v41, v32, v105")
    for s in range(1, 8):
        e.i("v_fmac_f32 v40, v%d, v%d" % (32 + s, 120 + s))
        e.i("v_fmac_f32 v41, v%d, v%d" % (32 + s, 105 + 2 * s))
    e.i("v_rcp_f32 v42, v41")
    e.i("v_mul_f32 v43, v40, v42")
    e.i("v_fma_f32 v44, -v43, v41, v40")
    e.i("v_fmac_f32 v43, v44, v42")
    bf16_round(e, 43, 44)
    e.i("ds_write_b32 v7, v43 offset:%d" % T_O)
    e.i("s_branch L_rec_join")
    e.label("L_rec_h")
    e.i("s_nop 3")
    e.i("s_cmp_lg_u32 s%d, 3" % S_W)
    e.i("s_cbranch_scc1 L_rec_join")
    e.i("v_lshlrev_b32 v4, 2, v1")
    e.i("s_lshl_b32 s87, s%d, 12" % S_H)
    e.i("s_add_u32 s87, s87, %d" % REC2_OFF)
    for s in range(8):
        e.i("buffer_load_dword v%d, v4, %s, s87 offen offset:%d sc0 sc1" % (104 + s, S4(S_WS), s * 512))
        e.i("buffer_load_dword v%d, v4, %s, s87 offen offset:%d sc0 sc1" % (112 + s, S4(S_WS), s * 512 + 192))
    e.i("s_waitcnt vmcnt(0)")
    for o in (104, 112):
        for a, b in ((0, 1), (2, 3), (4, 5), (6, 7), (0, 2), (4, 6), (0, 4)):
            e.i("v_add_f32 v%d, v%d, v%d" % (o + a, o + a, o + b))
    bf16_round_pair(e, 104, 112, 105)
    e.i("v_mul_f32 v104, v104, v112")
    bf16_round(e, 104, 105)
    e.i("s_mov_b32 exec_hi, 0xffff")
    e.i("ds_write_b32 v4, v104 offset:%d" % (T_O + 768))
    e.i("s_mov_b64 exec, -1")
    e.label("L_rec_join")
    e.i("s_nop 3")
    e.i("s_waitcnt lgkmcnt(0)")
    e.i("s_barrier")
    stamp(e, 7)
    e.i("s_mul_i32 s90, s%d, 96" % S_W)
    e.i("v_lshlrev_b32 v8, 2, v60")
    e.i("v_add_u32 v9, s90, v8")
    for i in range(4):
        e.i("ds_read_b32 v%d, v9 offset:%d" % (50 + i, T_O + 24 * i))
    e.i("s_mul_i32 s90, s%d, 24" % S_W)
    e.i("v_add_u32 v9, s90, v8")
    e.i("ds_read_b32 v54, v9 offset:%d" % (T_O + 768))
    e.i("s_waitcnt lgkmcnt(0)")
    A, B = 120, 128
    for i in range(4):
        for k in range(4):
            e.i("v_lshlrev_b32 v44, 16, v%d" % (64 + 4 * i + k))
            e.i("v_and_b32 v45, s%d, v%d" % (S_MASK, 64 + 4 * i + k))
            op = "v_mul_f32" if i == 0 else "v_fmac_f32"
            e.i("%s v%d, v%d, v44" % (op, A + 2 * k, 50 + i))
            e.i("%s v%d, v%d, v45" % (op, A + 2 * k + 1, 50 + i))
    for k in range(4):
        e.i("v_lshlrev_b32 v44, 16, v%d" % (80 + k))
        e.i("v_and_b32 v45, s%d, v%d" % (S_MASK, 80 + k))
        e.i("v_mul_f32 v%d, v54, v44" % (B + 2 * k))
        e.i("v_mul_f32 v%d, v54, v45" % (B + 2 * k + 1))
    e.i("s_mul_i32 s90, s%d, %d" % (S_W, 6 * 320))
    e.i("v_mul_u32_u24 v8, 320, v60")
    e.i("v_lshlrev_b32 v9, 5, v61")
    e.i("v_add3_u32 v8, v8, v9, s90")
    e.i("s_mov_b32 exec_hi, 0x0fffffff")
    e.i("ds_write_b128 v8, %s offset:%d" % (R(A, 4), T_PA))
    e.i("ds_write_b128 v8, %s offset:%d" % (R(A + 4, 4), T_PA + 16))
    e.i("ds_write_b128 v8, %s offset:%d" % (R(B, 4), T_PB))
    e.i("ds_write_b128 v8, %s offset:%d" % (R(B + 4, 4), T_PB + 16))
    e.i("s_mov_b64 exec, -1")
    e.i("s_waitcnt lgkmcnt(0)")
    e.i("s_barrier")
    stamp(e, 8)
    e.i("s_cmp_ge_u32 s%d, 3" % S_W)
    e.i("s_cbranch_scc1 L_tail_sync")
    e.i("v_cmp_le_u32 vcc, 80, v0")
    e.i("v_mov_b32 v8, 0")
    e.i("v_mov_b32 v9, %d" % (15360 - 320))
    e.i("v_cndmask_b32 v8, v8, v9, vcc")
    e.i("v_add_u32 v8, v8, v7")
    for sl in range(48):
        e.i("ds_read_b32 v%d, v8 offset:%d" % (140 + sl, T_PA + sl * 320))
    e.i("s_waitcnt lgkmcnt(0)")
    for st in (24, 12, 6, 3):
        for k in range(st):
            e.i("v_add_f32 v%d, v%d, v%d" % (140 + k, 140 + k, 140 + k + st))
    e.i("v_add_f32 v140, v140, v141")
    e.i("v_add_f32 v140, v140, v142")
    e.i("s_lshl_b32 s90, s%d, 5" % S_S)
    e.i("s_add_u32 s90, s90, s%d" % S_H)
    e.i("s_mul_i32 s90, s90, 640")
    e.i("s_add_u32 s90, s90, %d" % PART_OFF)
    e.i("v_cmp_gt_u32 vcc, 160, v0")
    e.i("s_and_saveexec_b64 s[30:31], vcc")
    e.i("buffer_store_dword v140, v7, %s, s90 offen sc0 sc1" % S4(S_WS))
    e.i("s_mov_b64 exec, -1")
    e.label("L_tail_sync")
    e.i("s_nop 3")
    e.i("s_waitcnt vmcnt(0)")
    e.i("s_barrier")
    e.i("s_cmp_lg_u32 s%d, 0" % S_W)
    e.i("s_cbranch_scc1 L_tail_w")
    e.i("s_mov_b64 exec, 1")
    e.i("v_mov_b32 v8, 1")
    e.i("s_lshl_b32 s90, s%d, 2" % S_S)
    e.i("s_add_u32 s90, s90, 128")
    e.i("v_mov_b32 v9, s90")
    e.i("buffer_atomic_add v8, v9, %s, 0 offen sc0 sc1" % S4(S_DBG))
    e.i("s_waitcnt vmcnt(0)")
    e.i("v_mov_b32 v9, %d" % T_FLAG)
    e.i("ds_write_b32 v9, v8")
    e.i("s_mov_b64 exec, -1")
    e.label("L_tail_w")
    e.i("s_nop 3")
    e.i("s_waitcnt lgkmcnt(0)")
    e.i("s_barrier")
    e.i("v_mov_b32 v9, %d" % T_FLAG)
    e.i("ds_read_b32 v8, v9")
    e.i("s_waitcnt lgkmcnt(0)")
    stamp(e, 9)
    stamp_store(e, 17, 0)
    e.i("v_readfirstlane_b32 s90, v8")
    e.i("s_cmp_lg_u32 s90, 31")
    e.i("s_cbranch_scc1 L_exit")
    e.i("s_cmp_ge_u32 s%d, 3" % S_W)
    e.i("s_cbranch_scc1 L_tail_fin2")
    e.i("s_mul_i32 s90, s%d, %d" % (S_S, 32 * 640))
    e.i("s_add_u32 s90, s90, %d" % PART_OFF)
    for hh in range(32):
        e.i("buffer_load_dword v%d, v7, %s, s90 offen sc0 sc1" % (140 + hh, S4(S_WS)))
        if hh < 31:
            e.i("s_add_u32 s90, s90, 640")
    e.i("s_waitcnt vmcnt(0)")
    for st in (16, 8, 4, 2, 1):
        for k in range(st):
            e.i("v_add_f32 v%d, v%d, v%d" % (140 + k, 140 + k, 140 + k + st))
    bf16_round(e, 140, 141)
    e.i("ds_write_b32 v7, v140 offset:%d" % T_FIN)
    e.label("L_tail_fin2")
    e.i("s_nop 3")
    e.i("s_waitcnt lgkmcnt(0)")
    e.i("s_barrier")
    e.i("s_cmp_ge_u32 s%d, 2" % S_W)
    e.i("s_cbranch_scc1 L_exit")
    e.i("ds_read_b32 v8, v7 offset:%d" % T_FIN)
    e.i("ds_read_b32 v9, v7 offset:%d" % (T_FIN + 320))
    e.i("s_waitcnt lgkmcnt(0)")
    e.i("v_mul_f32 v8, s91, v8")
    e.i("v_mov_b32 v10, s91")
    e.i("v_sub_f32 v10, 1.0, v10")
    bf16_round(e, 10, 11)
    e.i("v_mul_f32 v9, v10, v9")
    bf16_round_pair(e, 8, 9, 11)
    e.i("v_add_f32 v8, v8, v9")
    e.i("v_cvt_pk_bf16_f32 v8, v8, v8")
    e.i("s_mul_i32 s90, s%d, 160" % S_S)
    e.i("v_lshlrev_b32 v9, 1, v0")
    e.i("v_cmp_gt_u32 vcc, 80, v0")
    e.i("s_and_saveexec_b64 s[30:31], vcc")
    e.i("buffer_store_short v8, v9, %s, s90 offen" % S4(S_OUT))
    e.i("s_mov_b64 exec, -1")
    stamp(e, 10)
    stamp_store(e, 17, 0)
    if STAMPS and DBGOUT:
        e.i("s_cmp_lg_u32 s%d, 0" % S_S)
        e.i("s_cbranch_scc1 L_exit")
        e.i("s_cmp_lg_u32 s%d, 0" % S_W)
        e.i("s_cbranch_scc1 L_exit")
        e.i("s_mov_b64 exec, 1")
        e.i("v_mov_b32 v250, 0")
        for n in range(1, 15):
            e.i("s_sub_u32 s90, s%d, s%d" % (STAMP_REGS[n], STAMP_REGS[0]))
            e.i("v_mov_b32 v251, s90")
            e.i("buffer_store_dword v251, v250, %s, 0 offen offset:%d" % (S4(S_DBG), 4 * n))
    e.label("L_exit")
    e.i("s_endpgm")


def descriptor(name, vgpr, sgpr=102):
    acc = (vgpr + 3) // 4 * 4
    return """.p2align 6
.amdhsa_kernel %s
  .amdhsa_next_free_vgpr %d
  .amdhsa_next_free_sgpr %d
  .amdhsa_accum_offset %d
  .amdhsa_group_segment_fixed_size 0
  .amdhsa_kernarg_size 104
  .amdhsa_user_sgpr_count 2
  .amdhsa_user_sgpr_kernarg_segment_ptr 1
  .amdhsa_system_sgpr_workgroup_id_x 1
.end_amdhsa_kernel
""" % (name, vgpr, sgpr, acc)


KPRE = 5
KLATE = False
QBAR = False
KPACE = 2
DBGOUT = False
NOW = False
VP = 16
NOSYNC = False
QSLEEP0 = 100
QSLEEP1 = 16


def main():
    global STAMPS, KPRE, KLATE, NT, QBAR, KPACE, DBGOUT, NOW, VP, NOSYNC, QSLEEP0, QSLEEP1
    outf = OUT
    for a in sys.argv[1:]:
        if a == "stamps":
            STAMPS = True
        elif a.startswith("out="):
            outf = a[4:]
        elif a.startswith("kpre="):
            KPRE = int(a[5:])
        elif a == "klate":
            KLATE = True
        elif a.startswith("kpace="):
            KPACE = int(a[6:])
        elif a.startswith("qs0="):
            QSLEEP0 = int(a[4:])
        elif a.startswith("qs1="):
            QSLEEP1 = int(a[4:])
        elif a == "nosync":
            NOSYNC = True
        elif a.startswith("vp="):
            VP = int(a[3:])
        elif a.startswith("now="):
            NOW = a[4:]
        elif a == "dbgout":
            DBGOUT = True
        elif a == "qbar":
            QBAR = True
        elif a.startswith("pol="):
            NT = " " + a[4:].replace("+", " ")
        elif a == "nont":
            NT = ""
    ref = open(OUT + ".ref").read().splitlines()
    head = []
    for ln in ref:
        if ln.startswith(";") and "@launch" not in ln:
            head.append(ln)
        elif ln.startswith(";"):
            continue
        else:
            break
    e1 = Emit()
    fused_kernel(e1)
    txt = "\n".join(head) + "\n"
    txt += "; @launch grid=(256,1,1) block=(512,1,1) lds=%d\n" % (FUSED_LDS + 192)
    txt += '.amdgcn_target "amdgcn-amd-amdhsa--gfx950"\n.text\n'
    txt += e1.text()
    txt += '.section .rodata,"a"\n'
    txt += descriptor(KNAME, 256)
    open(outf, "w").write(txt)


if __name__ == "__main__":
    main()
```
